```python
import torch

def _softmax(x, axis=-1):
    return torch.softmax(x, dim=axis)
def _gelu(x):
    return torch.nn.functional.gelu(x, approximate="tanh")
def _silu(x):
    return torch.nn.functional.silu(x)
def _sigmoid(x):
    return torch.sigmoid(x)
def _layernorm(x, axis=-1, eps=1e-5):
    m = x.mean(dim=axis, keepdim=True)
    v = x.var(dim=axis, keepdim=True, unbiased=False)
    return (x - m) / torch.sqrt(v + eps)
def _scatter_add(tgt, idx, src, axis=0):
    return tgt.clone().index_add_(axis, idx, src)
def _segment_sum(src, seg, n):
    out = torch.zeros((n,) + src.shape[1:], dtype=src.dtype)
    return out.index_add_(0, seg, src)
def _pad(x, pw):
    flat = tuple(v for pair in reversed(pw) for v in pair)
    return torch.nn.functional.pad(x, flat)

kernel_name = 'standalone__groupnorm__prompt'

def setup_inputs():

    _w = (lambda a: (lambda t: t.to(torch.bfloat16) if t.is_floating_point() else t)(torch.as_tensor(a)))
    B = 2
    G = 32
    cpg = max(1, 1024 // G)
    C = G * cpg
    H, W = 32, 2048
    return {
        "x": _w(abs((lambda *s: torch.randn(*s, dtype=torch.bfloat16) * 0.05)(B, C, H, W))),
        "g": _w((lambda *s: torch.randn(*s, dtype=torch.bfloat16) * 0.05)(C) + 1.0),
        "b": _w((lambda *s: torch.randn(*s, dtype=torch.bfloat16) * 0.4)(C)),
    }

def reference(x, g, b):
    G = 32
    B, C, H, W = x.shape[0], x.shape[1], x.shape[2], x.shape[3]
    xr = x.reshape(B, G, C // G, H, W)
    mu = xr.mean(axis=(2, 3, 4), keepdims=True)
    var = ((xr - mu) ** 2).mean(axis=(2, 3, 4), keepdims=True)
    xn = (xr - mu) / torch.sqrt(var + 1e-5)
    xn = xn.reshape(B, C, H, W)
    return xn * g[None, :, None, None] + b[None, :, None, None]
```

```python
import sys, argparse

HEADER = """; Kernarg layout for this problem (48 bytes, ptrs only, base s[0:1]):
"""
NAME = "standalone__groupnorm__prompt_kernel"
TOTAL = 1 << 28
GROUP = 1 << 22
CHAN = 1 << 17


def log2(n):
    assert n & (n - 1) == 0
    return n.bit_length() - 1


def gen(nt=256, nld=16, ldf="", stf="", copy=False, vgpr=None, sleep=2, layout="wave"):
    nw = nt // 64
    slice_b = nt * nld * 16
    team = GROUP // slice_b
    nwg = TOTAL // slice_b
    assert team <= 64 and slice_b <= CHAN
    n_per_wg = slice_b // 2
    wsb = 64 * team * 8
    D = 16
    nv = D + nld * 4
    o = []
    A = o.append
    A(HEADER + f"; @launch grid=({nwg},1,1) block=({nt},1,1) lds=288")
    A('.amdgcn_target "amdgcn-amd-amdhsa--gfx950"')
    A(".text")
    A(f".globl {NAME}")
    A(".p2align 8")
    A(f".type {NAME},@function")
    A(f"{NAME}:")
    A(f"    s_cmp_ge_u32 s2, {nwg}")
    A("    s_cbranch_scc1 L_end")
    A("    s_load_dwordx4 s[4:7], s[0:1], 0")
    A("    s_load_dwordx4 s[8:11], s[0:1], 16")
    A("    s_load_dwordx4 s[12:15], s[0:1], 32")
    A("    v_lshrrev_b32 v2, 6, v0                 ; wave id")
    A("    v_and_b32 v3, 63, v0")
    A(f"    s_lshl_b32 s3, s2, {log2(slice_b)}")
    if layout == "wave":
        A(f"    v_lshlrev_b32 v1, {log2(nld * 1024)}, v2")
        A("    v_lshl_add_u32 v1, v3, 4, v1")
        step = 1024
    else:
        A("    v_lshlrev_b32 v1, 4, v0")
        step = nt * 16
    A("    v_readfirstlane_b32 s36, v2")
    A("    v_add_u32 v1, s3, v1")
    offs = [i * step for i in range(nld)]
    bases = sorted(set(x & ~4095 for x in offs) | set(range(0, wsb, 4096)))
    sreg = {}
    k = 40
    for bse in bases:
        if bse == 0:
            sreg[bse] = "0"
        else:
            sreg[bse] = f"s{k}"
            A(f"    s_mov_b32 s{k}, {bse}")
            k += 1
    nsg = k
    A("    s_mov_b32 s18, 0x10000000")
    A("    s_mov_b32 s19, 0x00020000")
    A("    s_mov_b32 s22, 0x10000000")
    A("    s_mov_b32 s23, 0x00020000")
    A(f"    s_mov_b32 s26, {wsb}")
    A("    s_mov_b32 s27, 0x00020000")
    A("    s_mov_b32 s30, 256")
    A("    s_mov_b32 s31, 0x00020000")
    A(f"    s_lshr_b32 s32, s2, {log2(CHAN // slice_b)}")
    A("    s_and_b32 s32, s32, 1023                ; channel")
    A("    s_lshl_b32 s33, s32, 1")
    A("    s_and_b32 s33, s33, 0x7fc")
    A("    s_waitcnt lgkmcnt(0)")
    A("    s_mov_b32 s16, s4")
    A("    s_mov_b32 s17, s5")
    A("    s_mov_b32 s20, s10")
    A("    s_mov_b32 s21, s11")
    A("    s_mov_b32 s24, s14")
    A("    s_mov_b32 s25, s15")
    A("    s_mov_b32 s28, s12")
    A("    s_mov_b32 s29, s13")
    if not copy:
        A("    s_load_dword s34, s[6:7], s33")
        A("    s_load_dword s35, s[8:9], s33")
        A("    s_cmp_lg_u32 s2, 0")
        A("    s_cbranch_scc1 L_noinit")
        A("    v_mov_b32 v4, -1")
        A("    v_mov_b32 v5, -1")
        A("    v_mov_b32 v6, -1")
        A("    v_mov_b32 v7, -1")
        A("    v_and_b32 v8, 255, v0")
        A("    v_lshlrev_b32 v8, 4, v8")
        for bse in range(0, wsb, 4096):
            A(f"    buffer_store_dwordx4 v[4:7], v8, s[24:27], {sreg[bse]} offen sc1")
        A("    s_waitcnt vmcnt(0)")
        A("    s_barrier")
        A("    s_cmp_lg_u32 s36, 0")
        A("    s_cbranch_scc1 L_noinit")
        A("    v_mov_b32 v4, 1")
        A("    v_mov_b32 v8, 0")
        A("    s_mov_b64 exec, 1")
        A("    buffer_store_dword v4, v8, s[28:31], 0 offen sc1")
        A("    s_mov_b64 exec, -1")
        A("L_noinit:")
        A("    v_mov_b32 v8, 0")
        A("    s_cmp_lg_u32 s36, 0")
        A("    s_cbranch_scc1 L_noflag")
        A("    s_mov_b64 exec, 1")
        A("    buffer_load_dword v15, v8, s[28:31], 0 offen sc1")
        A("    s_mov_b64 exec, -1")
        A("L_noflag:")
    for i in range(nld):
        A(f"    buffer_load_dwordx4 v[{D+4*i}:{D+4*i+3}], v1, s[16:19], {sreg[offs[i] & ~4095]} offen offset:{offs[i] & 4095} {ldf}".rstrip())
    if copy:
        for i in range(nld):
            A(f"    s_waitcnt vmcnt({nld-1})")
            A(f"    buffer_store_dwordx4 v[{D+4*i}:{D+4*i+3}], v1, s[20:23], {sreg[offs[i] & ~4095]} offen offset:{offs[i] & 4095} {stf}".rstrip())
        A("L_end:")
        A("    s_endpgm")
        return finish(o, vgpr or nv, nsg)
    A("    s_mov_b32 s37, 0x3f803f80")
    for r in range(4, 12):
        A(f"    v_mov_b32 v{r}, 0")
    for i in range(nld):
        A(f"    s_waitcnt vmcnt({nld-1-i})")
        for j in range(4):
            A(f"    v_dot2c_f32_bf16 v{4+j}, s37, v{D+4*i+j}")
        for j in range(4):
            A(f"    v_dot2c_f32_bf16 v{8+j}, v{D+4*i+j}, v{D+4*i+j}")
    A("    s_nop 2")
    A("    v_add_f32 v4, v4, v5")
    A("    v_add_f32 v6, v6, v7")
    A("    v_cvt_f64_f32 v[12:13], v8")
    A("    v_add_f32 v4, v4, v6")
    A("    v_cvt_f64_f32 v[6:7], v9")
    A("    v_cvt_f64_f32 v[8:9], v10")
    A("    v_cvt_f64_f32 v[10:11], v11")
    A("    v_add_f64 v[6:7], v[6:7], v[12:13]")
    A("    v_add_f64 v[8:9], v[8:9], v[10:11]")
    A("    v_add_f64 v[6:7], v[6:7], v[8:9]")
    for ctl in ["row_shr:1 row_mask:0xf", "row_shr:2 row_mask:0xf", "row_shr:4 row_mask:0xf", "row_shr:8 row_mask:0xf",
                "row_bcast:15 row_mask:0xa", "row_bcast:31 row_mask:0xc"]:
        A("    v_mov_b32 v8, 0")
        A("    v_mov_b32 v9, 0")
        A("    v_mov_b32 v5, 0")
        A(f"    v_mov_b32_dpp v8, v6 {ctl} bank_mask:0xf")
        A(f"    v_mov_b32_dpp v9, v7 {ctl} bank_mask:0xf")
        A(f"    v_mov_b32_dpp v5, v4 {ctl} bank_mask:0xf")
        A("    v_add_f64 v[6:7], v[6:7], v[8:9]")
        A("    v_add_f32 v4, v4, v5")
    A("    v_mov_b32 v8, v4")
    A("    v_lshlrev_b32 v5, 4, v2                 ; wave*16")
    A("    s_mov_b32 exec_lo, 0")
    A("    s_mov_b32 exec_hi, 0x80000000")
    A("    ds_write_b96 v5, v[6:8]")
    A("    s_mov_b64 exec, -1")
    A("    s_waitcnt lgkmcnt(0)")
    A("    s_barrier")
    A("    s_cmp_lg_u32 s36, 0")
    A("    s_cbranch_scc1 L_wait")
    A("    v_mov_b32 v5, 0")
    A("    ds_read_b96 v[6:8], v5")
    for w in range(1, nw):
        A(f"    ds_read_b96 v[10:12], v5 offset:{16*w}")
        A("    s_waitcnt lgkmcnt(0)")
        A("    v_add_f64 v[6:7], v[6:7], v[10:11]")
        A("    v_add_f32 v8, v8, v12")
    A("    s_waitcnt lgkmcnt(0)")
    A("    v_cvt_f64_f32 v[10:11], v8              ; S")
    A(f"    v_mul_f32 v4, 0x{f32(1.0/n_per_wg):08x}, v8")
    A("    v_cvt_f64_f32 v[12:13], v4")
    A("    v_fma_f64 v[6:7], -v[10:11], v[12:13], v[6:7]   ; M2 = Q - S*mean")
    A("    v_cvt_f32_f64 v5, v[6:7]")
    A("    v_and_b32 v5, 0x7fffffff, v5")
    A("    v_readfirstlane_b32 s38, v15")
    A("    s_mov_b32 s39, 400000")
    A("    v_mov_b32 v8, 0")
    A("L_flag:")
    A("    s_cmp_lg_u32 s38, 0")
    A("    s_cbranch_scc1 L_flagok")
    A("    s_mov_b64 exec, 1")
    A("    buffer_load_dword v15, v8, s[28:31], 0 offen sc1")
    A("    s_mov_b64 exec, -1")
    A("    s_waitcnt vmcnt(0)")
    A("    v_readfirstlane_b32 s38, v15")
    A("    s_sub_u32 s39, s39, 1")
    A("    s_cmp_lg_u32 s39, 0")
    A("    s_cbranch_scc1 L_flag")
    A("L_flagok:")
    A("    s_lshl_b32 s38, s2, 3")
    A("    v_mov_b32 v8, s38")
    A("    s_mov_b64 exec, 1")
    A("    buffer_store_dwordx2 v[4:5], v8, s[24:27], 0 offen sc1")
    A("    s_mov_b64 exec, -1")
    A(f"    s_and_b32 s38, s38, 0x{(~(team*8-1)) & 0xffffffff:x}")
    A(f"    v_and_b32 v8, {team-1}, v3")
    A("    v_lshl_add_u32 v8, v8, 3, s38")
    A("    s_mov_b32 s39, 400000")
    A("L_poll:")
    A("    buffer_load_dwordx2 v[6:7], v8, s[24:27], 0 offen sc1")
    A("    s_waitcnt vmcnt(0)")
    A("    v_cmp_gt_i32 vcc, 0, v7")
    A("    s_and_b64 exec, exec, vcc")
    A("    s_cbranch_execz L_polled")
    A(f"    s_sleep {sleep}")
    A("    s_sub_u32 s39, s39, 1")
    A("    s_cmp_lg_u32 s39, 0")
    A("    s_cbranch_scc1 L_poll")
    A("L_polled:")
    A("    s_mov_b64 exec, -1")
    def reduce63(v, t):
        for ctl in ["row_shr:1 row_mask:0xf", "row_shr:2 row_mask:0xf", "row_shr:4 row_mask:0xf", "row_shr:8 row_mask:0xf",
                    "row_bcast:15 row_mask:0xa", "row_bcast:31 row_mask:0xc"]:
            A(f"    v_mov_b32 v{t}, 0")
            A("    s_nop 1")
            A(f"    v_mov_b32_dpp v{t}, v{v} {ctl} bank_mask:0xf")
            A(f"    v_add_f32 v{v}, v{v}, v{t}")
    A("    v_mov_b32 v4, v6")
    A("    s_nop 4")
    reduce63(4, 5)
    A(f"    v_mul_f32 v4, 0x{f32(1.0/64):08x}, v4")
    A("    s_nop 0")
    A("    v_readlane_b32 s38, v4, 63")
    A("    s_nop 1")
    A("    v_subrev_f32 v6, s38, v6")
    A(f"    v_mul_f32 v7, 0x{f32(1.0/n_per_wg):08x}, v7")
    A("    v_fmac_f32 v7, v6, v6                   ; var_i + d*d")
    reduce63(7, 5)
    A(f"    v_mul_f32 v7, 0x{f32(1.0/64):08x}, v7")
    A("    s_nop 0")
    A("    v_readlane_b32 s39, v7, 63")
    A("    v_mov_b32 v4, s38")
    A("    v_cvt_pk_bf16_f32 v5, v4, v4")
    A("    v_lshlrev_b32 v5, 16, v5")
    A("    v_sub_f32 v6, v4, v5")
    A("    v_fma_f32 v6, v6, v6, s39")
    A("    v_cvt_pk_bf16_f32 v6, v6, v6")
    A("    v_lshlrev_b32 v6, 16, v6")
    A(f"    v_add_f32 v6, 0x{f32(1e-5):08x}, v6")
    A("    v_cvt_pk_bf16_f32 v6, v6, v6")
    A("    v_lshlrev_b32 v6, 16, v6")
    A("    v_sqrt_f32 v6, v6")
    A("    s_nop 0")
    A("    v_cvt_pk_bf16_f32 v6, v6, v6")
    A("    v_lshlrev_b32 v6, 16, v6")
    A("    v_rcp_f32 v6, v6")
    A("    s_bitcmp1_b32 s32, 0")
    A("    s_cselect_b32 s33, 0, 16")
    A("    s_lshl_b32 s34, s34, s33")
    A("    s_lshl_b32 s35, s35, s33")
    A("    s_and_b32 s34, s34, 0xffff0000")
    A("    s_and_b32 s35, s35, 0xffff0000")
    A("    v_mul_f32 v6, s34, v6                   ; A = g / s")
    A("    v_fma_f32 v7, -v5, v6, s35              ; B = b - mu*A")
    A("    v_mov_b32 v8, 0")
    A("    s_mov_b64 exec, 1")
    A("    ds_write_b64 v8, v[6:7] offset:256")
    A("    s_mov_b64 exec, -1")
    A("    s_waitcnt lgkmcnt(0)")
    A("L_wait:")
    A("    s_barrier")
    A("    v_mov_b32 v8, 0")
    A("    ds_read_b64 v[6:7], v8 offset:256")
    A("    s_mov_b32 s37, 0xffff0000")
    A("    s_waitcnt lgkmcnt(0)")
    for i in range(nld):
        for j in range(4):
            r = D + 4 * i + j
            t = 8 + 2 * j
            A(f"    v_lshlrev_b32 v{t}, 16, v{r}")
            A(f"    v_and_b32 v{t+1}, s37, v{r}")
        for j in range(4):
            t = 8 + 2 * j
            A(f"    v_fma_f32 v{t}, v{t}, v6, v7")
            A(f"    v_fma_f32 v{t+1}, v{t+1}, v6, v7")
        for j in range(4):
            r = D + 4 * i + j
            t = 8 + 2 * j
            A(f"    v_cvt_pk_bf16_f32 v{r}, v{t}, v{t+1}")
        A(f"    buffer_store_dwordx4 v[{D+4*i}:{D+4*i+3}], v1, s[20:23], {sreg[offs[i] & ~4095]} offen offset:{offs[i] & 4095} {stf}".rstrip())
    A("L_end:")
    A("    s_endpgm")
    return finish(o, vgpr or nv, nsg)


def f32(x):
    import struct
    return struct.unpack("<I", struct.pack("<f", x))[0]


def finish(o, nv, nsg):
    A = o.append
    A('.section .rodata,"a"')
    A(".p2align 6")
    A(f".amdhsa_kernel {NAME}")
    A(f"  .amdhsa_next_free_vgpr {nv}")
    A(f"  .amdhsa_next_free_sgpr {nsg}")
    A(f"  .amdhsa_accum_offset {min(256, (nv + 3) // 4 * 4)}")
    A("  .amdhsa_group_segment_fixed_size 0")
    A("  .amdhsa_kernarg_size 48")
    A("  .amdhsa_user_sgpr_count 2")
    A("  .amdhsa_user_sgpr_kernarg_segment_ptr 1")
    A("  .amdhsa_system_sgpr_workgroup_id_x 1")
    A("  .amdhsa_float_denorm_mode_32 3")
    A(".end_amdhsa_kernel")
    return "\n".join(o) + "\n"


if __name__ == "__main__":
    p = argparse.ArgumentParser()
    p.add_argument("--nt", type=int, default=256)
    p.add_argument("--nld", type=int, default=16)
    p.add_argument("--ldf", default="")
    p.add_argument("--stf", default="")
    p.add_argument("--copy", action="store_true")
    p.add_argument("--vgpr", type=int, default=0)
    p.add_argument("--sleep", type=int, default=2)
    p.add_argument("--layout", default="wave")
    p.add_argument("-o", default="-")
    a = p.parse_args()
    s = gen(a.nt, a.nld, a.ldf, a.stf, a.copy, a.vgpr or None, a.sleep, a.layout)
    if a.o == "-":
        sys.stdout.write(s)
    else:
        open(a.o, "w").write(s)
```

```python
import sys
from gen1 import NAME
base = open(sys.argv[1]).read()
o = []
A = o.append
A(".p2align 8")
A(".globl probe_kernel")
A(".type probe_kernel,@function")
A("probe_kernel:")
A("    s_cmp_ge_u32 s2, 1")
A("    s_cbranch_scc1 P_end")
A("    s_load_dwordx4 s[4:7], s[0:1], 0")
A("    s_load_dwordx4 s[8:11], s[0:1], 16")
A("    s_load_dwordx4 s[12:15], s[0:1], 32")
A("    s_getreg_b32 s40, hwreg(HW_REG_XCC_ID)")
A("    s_waitcnt lgkmcnt(0)")
for r, (lo, hi, sz) in {16: (4, 5, 0x10000000), 20: (10, 11, 0x10000000), 28: (12, 13, 256), 24: (14, 15, 0x40000000)}.items():
    A(f"    s_mov_b32 s{r}, s{lo}")
    A(f"    s_mov_b32 s{r+1}, s{hi}")
    A(f"    s_mov_b32 s{r+2}, {sz}")
    A(f"    s_mov_b32 s{r+3}, 0x00020000")
A("    v_mov_b32 v10, s40")
A("    s_lshr_b32 s41, s4, 20")
A("    v_mov_b32 v11, s41")
A("    s_lshr_b32 s41, s10, 20")
A("    v_mov_b32 v12, s41")
M = 1 << 21
targets = [(16, 0), (16, 8192), (16, M), (16, 64 * M), (16, 127 * M), (16, 33 * M), (20, 0), (20, 8192), (20, M), (20, 64 * M), (20, 127 * M), (20, 33 * M), (24, 0)]
for k, (srd, off) in enumerate(targets):
    A(f"    v_mov_b32 v1, {off}")
    A(f"    buffer_load_dword v2, v1, s[{srd}:{srd+3}], 0 offen offset:3968 nt")
    A("    s_waitcnt vmcnt(0)")
    A("    s_mov_b32 s42, -1")
    for j in range(12):
        A("    s_memtime s[44:45]")
        A("    s_waitcnt lgkmcnt(0)")
        A(f"    buffer_load_dword v2, v1, s[{srd}:{srd+3}], 0 offen offset:{j*256} nt")
        A("    s_waitcnt vmcnt(0)")
        A("    s_memtime s[46:47]")
        A("    s_waitcnt lgkmcnt(0)")
        A("    s_sub_u32 s43, s46, s44")
        A("    s_min_u32 s42, s42, s43")
    A(f"    v_mov_b32 v{13+k}, s42")
A("    v_mov_b32 v1, 0")
for k in range(16):
    A(f"    buffer_store_dword v{10+k}, v1, s[28:31], 0 offen offset:{4*k}")
A("P_end:")
A("    s_endpgm")
probe = "\n".join(o) + "\n"
kd = """.p2align 6
.amdhsa_kernel probe_kernel
  .amdhsa_next_free_vgpr 32
  .amdhsa_next_free_sgpr 64
  .amdhsa_accum_offset 32
  .amdhsa_group_segment_fixed_size 0
  .amdhsa_kernarg_size 48
  .amdhsa_user_sgpr_count 2
  .amdhsa_user_sgpr_kernarg_segment_ptr 1
  .amdhsa_system_sgpr_workgroup_id_x 1
.end_amdhsa_kernel
"""
import re
m = re.search(r"; @launch (grid=\S+ block=\S+ lds=\d+)", base)
s = base.replace(m.group(0), f"; @launch kernel=probe_kernel grid=(1,1,1) block=(1,1,1) lds=0\n; @launch kernel={NAME} {m.group(1)}")
s = s.replace('.section .rodata,"a"', probe + '.section .rodata,"a"')
s = s + kd
open(sys.argv[2], "w").write(s)
```

```python
import sys
from gen1 import NAME
base = open(sys.argv[1]).read()
o = []
A = o.append
A(".p2align 8")
A(".globl probe_kernel")
A(".type probe_kernel,@function")
A("probe_kernel:")
A("    s_cmp_ge_u32 s2, 1")
A("    s_cbranch_scc1 P_end")
A("    s_load_dwordx4 s[4:7], s[0:1], 0")
A("    s_load_dwordx4 s[8:11], s[0:1], 16")
A("    s_load_dwordx4 s[12:15], s[0:1], 32")
A("    s_getreg_b32 s40, hwreg(HW_REG_XCC_ID)")
A("    s_waitcnt lgkmcnt(0)")
for r, (lo, hi, sz) in {16: (4, 5, 0x10000000), 20: (10, 11, 0x10000000), 28: (12, 13, 256), 24: (14, 15, 0x40000000)}.items():
    A(f"    s_mov_b32 s{r}, s{lo}")
    A(f"    s_mov_b32 s{r+1}, s{hi}")
    A(f"    s_mov_b32 s{r+2}, {sz}")
    A(f"    s_mov_b32 s{r+3}, 0x00020000")
A("    v_mov_b32 v10, s40")
A("    s_lshr_b32 s41, s4, 20")
A("    v_mov_b32 v11, s41")
A("    s_lshr_b32 s41, s10, 20")
A("    v_mov_b32 v12, s41")
M = 1 << 21
targets = [(16, 0), (16, 8192), (16, M), (16, 64 * M), (16, 127 * M), (16, 33 * M), (20, 0), (20, 8192), (20, M), (20, 64 * M), (20, 127 * M), (20, 33 * M), (24, 0)]
for k, (srd, off) in enumerate(targets):
    A(f"    v_mov_b32 v1, {off}")
    A(f"    buffer_load_dword v2, v1, s[{srd}:{srd+3}], 0 offen offset:3968 nt")
    A("    s_waitcnt vmcnt(0)")
    A("    s_mov_b32 s42, -1")
    for j in range(12):
        A("    s_memtime s[44:45]")
        A("    s_waitcnt lgkmcnt(0)")
        A(f"    buffer_load_dword v2, v1, s[{srd}:{srd+3}], 0 offen offset:{j*256} nt")
        A("    s_waitcnt vmcnt(0)")
        A("    s_memtime s[46:47]")
        A("    s_waitcnt lgkmcnt(0)")
        A("    s_sub_u32 s43, s46, s44")
        A("    s_min_u32 s42, s42, s43")
    A(f"    v_mov_b32 v{13+k}, s42")
A("    v_mov_b32 v1, 0")
for k in range(16):
    A(f"    buffer_store_dword v{10+k}, v1, s[28:31], 0 offen offset:{4*k}")
A("    v_readfirstlane_b32 s50, v13")
A("    v_readfirstlane_b32 s51, v14")
A("    v_readfirstlane_b32 s52, v19")
A("    v_readfirstlane_b32 s53, v20")
A("    s_cmp_lt_u32 s50, s51")
A("    s_cselect_b32 s54, 1, 0")
A("    s_cmp_lt_u32 s52, s53")
A("    s_cselect_b32 s55, 1, 0")
A("    s_cmp_eq_u32 s54, s55")
A("    s_cbranch_scc1 P_end")
A("    s_mov_b32 s56, 60")
A("P_dl:")
A("    s_sleep 127")
A("    s_sub_u32 s56, s56, 1")
A("    s_cmp_lg_u32 s56, 0")
A("    s_cbranch_scc1 P_dl")
A("P_end:")
A("    s_endpgm")
probe = "\n".join(o) + "\n"
kd = """.p2align 6
.amdhsa_kernel probe_kernel
  .amdhsa_next_free_vgpr 32
  .amdhsa_next_free_sgpr 64
  .amdhsa_accum_offset 32
  .amdhsa_group_segment_fixed_size 0
  .amdhsa_kernarg_size 48
  .amdhsa_user_sgpr_count 2
  .amdhsa_user_sgpr_kernarg_segment_ptr 1
  .amdhsa_system_sgpr_workgroup_id_x 1
.end_amdhsa_kernel
"""
import re
m = re.search(r"; @launch (grid=\S+ block=\S+ lds=\d+)", base)
s = base.replace(m.group(0), f"; @launch kernel={NAME} {m.group(1)}\n; @launch kernel=probe_kernel grid=(1,1,1) block=(1,1,1) lds=0")
s = s.replace('.section .rodata,"a"', probe + '.section .rodata,"a"')
s = s + kd
open(sys.argv[2], "w").write(s)
```

```python
import sys, re
from gen1 import NAME
base = open(sys.argv[1]).read()
enc = sys.argv[3] if len(sys.argv) > 3 else "mis"
o = []
A = o.append
def pro(name, n, end):
    A(".p2align 8")
    A(f".globl {name}")
    A(f".type {name},@function")
    A(f"{name}:")
    A(f"    s_cmp_ge_u32 s2, {n}")
    A(f"    s_cbranch_scc1 {end}")
    A("    s_load_dwordx4 s[4:7], s[0:1], 0")
    A("    s_load_dwordx4 s[8:11], s[0:1], 16")
    A("    s_load_dwordx4 s[12:15], s[0:1], 32")
    A("    s_getreg_b32 s40, hwreg(HW_REG_XCC_ID)")
    A("    s_waitcnt lgkmcnt(0)")
    for r, (lo, hi, sz) in {28: (12, 13, 256), 24: (14, 15, 0x40000000)}.items():
        A(f"    s_mov_b32 s{r}, s{lo}")
        A(f"    s_mov_b32 s{r+1}, s{hi}")
        A(f"    s_mov_b32 s{r+2}, {sz}")
        A(f"    s_mov_b32 s{r+3}, 0x00020000")
pro("probea_kernel", 256, "PA_end")
A("    s_cmp_lt_u32 s2, 128")
A("    s_cselect_b32 s16, s4, s10")
A("    s_cselect_b32 s17, s5, s11")
A("    s_mov_b32 s18, 0x10000000")
A("    s_mov_b32 s19, 0x00020000")
A("    s_and_b32 s3, s2, 127")
A("    s_lshl_b32 s41, s3, 21")
A("    s_add_u32 s41, s41, 0x40000")
A("    v_mov_b32 v1, s41")
A("    v_add_u32 v3, 8192, v1")
A("    buffer_load_dword v2, v1, s[16:19], 0 offen offset:3968 nt")
A("    buffer_load_dword v2, v3, s[16:19], 0 offen offset:3968 nt")
A("    s_waitcnt vmcnt(0)")
A("    s_mov_b32 s48, -1")
A("    s_mov_b32 s49, -1")
A("    s_mov_b32 s50, 0")
for j in range(15):
    for h, (v, d) in enumerate([(1, 42), (3, 43)]):
        A("    s_memtime s[44:45]")
        A("    s_waitcnt lgkmcnt(0)")
        A(f"    buffer_load_dword v2, v{v}, s[16:19], 0 offen offset:{j*256} nt")
        A("    s_waitcnt vmcnt(0)")
        A("    s_memtime s[46:47]")
        A("    s_waitcnt lgkmcnt(0)")
        A(f"    s_sub_u32 s{d}, s46, s44")
        A(f"    s_min_u32 s{48+h}, s{48+h}, s{d}")
    A("    s_cmp_lt_u32 s43, s42")
    A("    s_addc_u32 s50, s50, 0")
A("    s_cmp_gt_u32 s50, 7")
A("    s_cselect_b32 s51, 1, 0")
A("    s_lshr_b32 s40, s40, 2")
A("    s_xor_b32 s51, s51, s40")
A("    s_xor_b32 s51, s51, s3")
A("    s_and_b32 s51, s51, 1")
A("    s_lshl_b32 s52, s50, 1")
A("    s_or_b32 s51, s51, s52")
A("    s_lshl_b32 s52, s48, 8")
A("    s_or_b32 s51, s51, s52")
A("    s_lshl_b32 s52, s49, 20")
A("    s_or_b32 s51, s51, s52")
A("    v_mov_b32 v2, s51")
A("    s_lshl_b32 s52, s2, 2")
A("    s_add_u32 s52, s52, 0x30000000")
A("    v_mov_b32 v1, s52")
A("    buffer_store_dword v2, v1, s[24:27], 0 offen")
A("PA_end:")
A("    s_endpgm")
pro("probeb_kernel", 1, "PB_end")
A("    v_lshlrev_b32 v1, 2, v0")
A("    v_add_u32 v1, 0x30000000, v1")
for k in range(4):
    A(f"    buffer_load_dword v{4+k}, v1, s[24:27], 0 offen offset:{256*k}")
A("    s_waitcnt vmcnt(0)")
for k in range(4):
    A(f"    v_and_b32 v2, 1, v{4+k}")
    A(f"    v_cmp_eq_u32 s[{42+2*k}:{43+2*k}], 1, v2")
A("    s_nop 2")
for k in range(8):
    A(f"    v_mov_b32 v{10+k}, s{42+k}")
for k, ln in enumerate([0, 1, 2, 63]):
    A(f"    v_readlane_b32 s52, v4, {ln}")
    A(f"    v_readlane_b32 s53, v6, {ln}")
    A("    s_nop 2")
    A(f"    v_mov_b32 v{18+k}, s52")
    A(f"    v_mov_b32 v{22+k}, s53")
A("    v_mov_b32 v1, 0")
A("    s_mov_b64 exec, 1")
for k in range(16):
    A(f"    buffer_store_dword v{10+k}, v1, s[28:31], 0 offen offset:{4*k}")
if enc == "mis":
    A("    s_xor_b64 s[42:43], s[42:43], s[46:47]")
    A("    s_xor_b64 s[44:45], s[44:45], s[48:49]")
elif enc == "out":
    A("    s_mov_b64 s[42:43], s[46:47]")
    A("    s_mov_b64 s[44:45], s[48:49]")
A("    s_bcnt1_i32_b64 s50, s[42:43]")
A("    s_bcnt1_i32_b64 s51, s[44:45]")
A("    s_add_u32 s50, s50, s51")
A("    s_mul_i32 s50, s50, 400")
A("    s_memrealtime s[44:45]")
A("    s_waitcnt lgkmcnt(0)")
A("PB_dl:")
A("    s_memrealtime s[46:47]")
A("    s_waitcnt lgkmcnt(0)")
A("    s_sub_u32 s52, s46, s44")
A("    s_cmp_lt_u32 s52, s50")
A("    s_cbranch_scc1 PB_dl")
A("PB_end:")
A("    s_endpgm")
probe = "\n".join(o) + "\n"
kd = ""
for nm in ["probea_kernel", "probeb_kernel"]:
    kd += f""".p2align 6
.amdhsa_kernel {nm}
  .amdhsa_next_free_vgpr 32
  .amdhsa_next_free_sgpr 64
  .amdhsa_accum_offset 32
  .amdhsa_group_segment_fixed_size 0
  .amdhsa_kernarg_size 48
  .amdhsa_user_sgpr_count 2
  .amdhsa_user_sgpr_kernarg_segment_ptr 1
  .amdhsa_system_sgpr_workgroup_id_x 1
.end_amdhsa_kernel
"""
m = re.search(r"; @launch (grid=\S+ block=\S+ lds=\d+)", base)
s = base.replace(m.group(0), f"; @launch kernel=probea_kernel grid=(256,1,1) block=(1,1,1) lds=0\n; @launch kernel={NAME} {m.group(1)}\n; @launch kernel=probeb_kernel grid=(1,1,1) block=(64,1,1) lds=0")
s = s.replace('.section .rodata,"a"', probe + '.section .rodata,"a"')
s = s + kd
open(sys.argv[2], "w").write(s)
```

```python
import sys, re
from gen1 import NAME
base = open(sys.argv[1]).read()
enc = sys.argv[3] if len(sys.argv) > 3 else "mis"
o = []
A = o.append
def pro(name, n, end):
    A(".p2align 8")
    A(f".globl {name}")
    A(f".type {name},@function")
    A(f"{name}:")
    A(f"    s_cmp_ge_u32 s2, {n}")
    A(f"    s_cbranch_scc1 {end}")
    A("    s_load_dwordx4 s[4:7], s[0:1], 0")
    A("    s_load_dwordx4 s[8:11], s[0:1], 16")
    A("    s_load_dwordx4 s[12:15], s[0:1], 32")
    A("    s_getreg_b32 s40, hwreg(HW_REG_XCC_ID)")
    A("    s_waitcnt lgkmcnt(0)")
    for r, (lo, hi, sz) in {28: (12, 13, 256), 24: (14, 15, 0x40000000)}.items():
        A(f"    s_mov_b32 s{r}, s{lo}")
        A(f"    s_mov_b32 s{r+1}, s{hi}")
        A(f"    s_mov_b32 s{r+2}, {sz}")
        A(f"    s_mov_b32 s{r+3}, 0x00020000")
pro("probea_kernel", 256, "PA_end")
A("    s_cmp_lt_u32 s2, 128")
A("    s_cselect_b32 s16, s4, s10")
A("    s_cselect_b32 s17, s5, s11")
A("    s_mov_b32 s18, 0x10000000")
A("    s_mov_b32 s19, 0x00020000")
A("    s_and_b32 s3, s2, 127")
A("    s_lshl_b32 s41, s3, 21")
A("    s_add_u32 s41, s41, 0x40000")
A("    v_mov_b32 v1, s41")
A("    v_add_u32 v3, 8192, v1")
A("    buffer_load_dword v2, v1, s[16:19], 0 offen offset:3968 nt")
A("    buffer_load_dword v2, v3, s[16:19], 0 offen offset:3968 nt")
A("    s_waitcnt vmcnt(0)")
A("    s_mov_b32 s48, -1")
A("    s_mov_b32 s49, -1")
A("    s_mov_b32 s50, 0")
for j in range(15):
    for h, (v, d) in enumerate([(1, 42), (3, 43)]):
        A("    s_memtime s[44:45]")
        A("    s_waitcnt lgkmcnt(0)")
        A(f"    buffer_load_dword v2, v{v}, s[16:19], 0 offen offset:{j*256} nt")
        A("    s_waitcnt vmcnt(0)")
        A("    s_memtime s[46:47]")
        A("    s_waitcnt lgkmcnt(0)")
        A(f"    s_sub_u32 s{d}, s46, s44")
        A(f"    s_min_u32 s{48+h}, s{48+h}, s{d}")
    A("    s_cmp_lt_u32 s43, s42")
    A("    s_addc_u32 s50, s50, 0")
A("    s_cmp_gt_u32 s50, 7")
A("    s_cselect_b32 s51, 1, 0")
A("    s_lshr_b32 s40, s40, 2")
A("    s_xor_b32 s51, s51, s40")
A("    s_xor_b32 s51, s51, s3")
A("    s_and_b32 s51, s51, 1")
A("    s_lshl_b32 s52, s50, 1")
A("    s_or_b32 s51, s51, s52")
A("    s_lshl_b32 s52, s48, 8")
A("    s_or_b32 s51, s51, s52")
A("    s_lshl_b32 s52, s49, 20")
A("    s_or_b32 s51, s51, s52")
A("    v_mov_b32 v2, s51")
A("    s_lshl_b32 s52, s2, 2")
A("    s_add_u32 s52, s52, 0x30000000")
A("    v_mov_b32 v1, s52")
A("    buffer_store_dword v2, v1, s[24:27], 0 offen")
A("PA_end:")
A("    s_endpgm")
pro("probeb_kernel", 1, "PB_end")
A("    v_lshlrev_b32 v1, 2, v0")
A("    v_add_u32 v1, 0x30000000, v1")
for k in range(4):
    A(f"    buffer_load_dword v{4+k}, v1, s[24:27], 0 offen offset:{256*k}")
A("    s_waitcnt vmcnt(0)")
for k in range(4):
    A(f"    v_and_b32 v2, 1, v{4+k}")
    A(f"    v_cmp_eq_u32 s[{42+2*k}:{43+2*k}], 1, v2")
A("    s_nop 2")
for k in range(8):
    A(f"    v_mov_b32 v{10+k}, s{42+k}")
for k, ln in enumerate([0, 1, 2, 63]):
    A(f"    v_readlane_b32 s52, v4, {ln}")
    A(f"    v_readlane_b32 s53, v6, {ln}")
    A("    s_nop 2")
    A(f"    v_mov_b32 v{18+k}, s52")
    A(f"    v_mov_b32 v{22+k}, s53")
A("    v_mov_b32 v1, 0")
A("    s_mov_b64 exec, 1")
for k in range(16):
    A(f"    buffer_store_dword v{10+k}, v1, s[28:31], 0 offen offset:{4*k}")
if enc == "mis":
    A("    s_xor_b64 s[42:43], s[42:43], s[46:47]")
    A("    s_xor_b64 s[44:45], s[44:45], s[48:49]")
elif enc == "out":
    A("    s_mov_b64 s[42:43], s[46:47]")
    A("    s_mov_b64 s[44:45], s[48:49]")
A("    s_bcnt1_i32_b64 s50, s[42:43]")
A("    s_bcnt1_i32_b64 s51, s[44:45]")
A("    s_add_u32 s50, s50, s51")
A("    s_mul_i32 s50, s50, 400")
if enc == "both":
    A("    s_and_b32 s50, s42, 1")
    A("    s_and_b32 s51, s46, 1")
    A("    s_lshl_b32 s51, s51, 1")
    A("    s_add_u32 s50, s50, s51")
    A("    s_mul_i32 s50, s50, 100000")
A("    s_memrealtime s[44:45]")
A("    s_waitcnt lgkmcnt(0)")
A("PB_dl:")
A("    s_memrealtime s[46:47]")
A("    s_waitcnt lgkmcnt(0)")
A("    s_sub_u32 s52, s46, s44")
A("    s_cmp_lt_u32 s52, s50")
A("    s_cbranch_scc1 PB_dl")
A("PB_end:")
A("    s_endpgm")
probe = "\n".join(o) + "\n"
kd = ""
for nm in ["probea_kernel", "probeb_kernel"]:
    kd += f""".p2align 6
.amdhsa_kernel {nm}
  .amdhsa_next_free_vgpr 32
  .amdhsa_next_free_sgpr 64
  .amdhsa_accum_offset 32
  .amdhsa_group_segment_fixed_size 0
  .amdhsa_kernarg_size 48
  .amdhsa_user_sgpr_count 2
  .amdhsa_user_sgpr_kernarg_segment_ptr 1
  .amdhsa_system_sgpr_workgroup_id_x 1
.end_amdhsa_kernel
"""
m = re.search(r"; @launch (grid=\S+ block=\S+ lds=\d+)", base)
s = base.replace(m.group(0), f"; @launch kernel=probea_kernel grid=(256,1,1) block=(1,1,1) lds=0\n; @launch kernel={NAME} {m.group(1)}\n; @launch kernel=probeb_kernel grid=(1,1,1) block=(64,1,1) lds=0")
s = s.replace('.section .rodata,"a"', probe + '.section .rodata,"a"')
s = s + kd
open(sys.argv[2], "w").write(s)
```

```python
import sys, re
from gen1 import NAME
base = open(sys.argv[1]).read()
enc = sys.argv[3] if len(sys.argv) > 3 else "mis"
o = []
A = o.append
def pro(name, n, end):
    A(".p2align 8")
    A(f".globl {name}")
    A(f".type {name},@function")
    A(f"{name}:")
    A(f"    s_cmp_ge_u32 s2, {n}")
    A(f"    s_cbranch_scc1 {end}")
    A("    s_load_dwordx4 s[4:7], s[0:1], 0")
    A("    s_load_dwordx4 s[8:11], s[0:1], 16")
    A("    s_load_dwordx4 s[12:15], s[0:1], 32")
    A("    s_getreg_b32 s40, hwreg(HW_REG_XCC_ID)")
    A("    s_waitcnt lgkmcnt(0)")
    for r, (lo, hi, sz) in {28: (12, 13, 256), 24: (14, 15, 0x40000000)}.items():
        A(f"    s_mov_b32 s{r}, s{lo}")
        A(f"    s_mov_b32 s{r+1}, s{hi}")
        A(f"    s_mov_b32 s{r+2}, {sz}")
        A(f"    s_mov_b32 s{r+3}, 0x00020000")
pro("probea_kernel", 256, "PA_end")
A("    s_cmp_lt_u32 s2, 128")
A("    s_cselect_b32 s16, s4, s10")
A("    s_cselect_b32 s17, s5, s11")
A("    s_mov_b32 s18, 0x10000000")
A("    s_mov_b32 s19, 0x00020000")
A("    s_and_b32 s3, s2, 127")
A("    s_lshl_b32 s41, s3, 21")
A("    s_add_u32 s41, s41, 0x40000")
A("    v_mov_b32 v1, s41")
A("    v_add_u32 v3, 8192, v1")
A("    buffer_load_dword v2, v1, s[16:19], 0 offen offset:3968 nt")
A("    buffer_load_dword v2, v3, s[16:19], 0 offen offset:3968 nt")
A("    s_waitcnt vmcnt(0)")
A("    s_mov_b32 s48, -1")
A("    s_mov_b32 s49, -1")
A("    s_mov_b32 s50, 0")
for j in range(15):
    for h, (v, d) in enumerate([(1, 42), (3, 43)]):
        A("    s_memtime s[44:45]")
        A("    s_waitcnt lgkmcnt(0)")
        A(f"    buffer_load_dword v2, v{v}, s[16:19], 0 offen offset:{j*256} nt")
        A("    s_waitcnt vmcnt(0)")
        A("    s_memtime s[46:47]")
        A("    s_waitcnt lgkmcnt(0)")
        A(f"    s_sub_u32 s{d}, s46, s44")
        A(f"    s_min_u32 s{48+h}, s{48+h}, s{d}")
    A("    s_cmp_lt_u32 s43, s42")
    A("    s_addc_u32 s50, s50, 0")
A("    s_cmp_gt_u32 s50, 7")
A("    s_cselect_b32 s51, 1, 0")
A("    s_lshr_b32 s40, s40, 2")
A("    s_xor_b32 s51, s51, s40")
A("    s_xor_b32 s51, s51, s3")
A("    s_and_b32 s51, s51, 1")
A("    s_lshl_b32 s52, s50, 1")
A("    s_or_b32 s51, s51, s52")
A("    s_lshl_b32 s52, s48, 8")
A("    s_or_b32 s51, s51, s52")
A("    s_lshl_b32 s52, s49, 20")
A("    s_or_b32 s51, s51, s52")
A("    v_mov_b32 v2, s51")
A("    s_lshl_b32 s52, s2, 2")
A("    s_add_u32 s52, s52, 0x30000000")
A("    v_mov_b32 v1, s52")
A("    buffer_store_dword v2, v1, s[24:27], 0 offen")
A("PA_end:")
A("    s_endpgm")
pro("probeb_kernel", 1, "PB_end")
A("    v_lshlrev_b32 v1, 2, v0")
A("    v_add_u32 v1, 0x30000000, v1")
for k in range(4):
    A(f"    buffer_load_dword v{4+k}, v1, s[24:27], 0 offen offset:{256*k}")
A("    s_waitcnt vmcnt(0)")
for k in range(4):
    A(f"    v_and_b32 v2, 1, v{4+k}")
    A(f"    v_cmp_eq_u32 s[{42+2*k}:{43+2*k}], 1, v2")
A("    s_nop 2")
for k in range(8):
    A(f"    v_mov_b32 v{10+k}, s{42+k}")
for k, ln in enumerate([0, 1, 2, 63]):
    A(f"    v_readlane_b32 s52, v4, {ln}")
    A(f"    v_readlane_b32 s53, v6, {ln}")
    A("    s_nop 2")
    A(f"    v_mov_b32 v{18+k}, s52")
    A(f"    v_mov_b32 v{22+k}, s53")
A("    v_mov_b32 v1, 0")
A("    s_mov_b64 exec, 1")
for k in range(16):
    A(f"    buffer_store_dword v{10+k}, v1, s[28:31], 0 offen offset:{4*k}")
if enc == "mis":
    A("    s_xor_b64 s[42:43], s[42:43], s[46:47]")
    A("    s_xor_b64 s[44:45], s[44:45], s[48:49]")
elif enc == "out":
    A("    s_mov_b64 s[42:43], s[46:47]")
    A("    s_mov_b64 s[44:45], s[48:49]")
A("    s_bcnt1_i32_b64 s50, s[42:43]")
A("    s_bcnt1_i32_b64 s51, s[44:45]")
A("    s_add_u32 s50, s50, s51")
A("    s_mul_i32 s50, s50, 400")
if enc == "both":
    A("    s_and_b32 s50, s42, 1")
    A("    s_and_b32 s51, s46, 1")
    A("    s_lshl_b32 s51, s51, 1")
    A("    s_add_u32 s50, s50, s51")
    A("    s_mul_i32 s50, s50, 100000")
if enc == "ptr":
    A("    s_bfe_u32 s50, s4, 0x2000c")
    A("    s_bfe_u32 s51, s10, 0x2000c")
    A("    s_lshl_b32 s51, s51, 2")
    A("    s_add_u32 s50, s50, s51")
    A("    s_or_b32 s51, s4, s10")
    A("    s_and_b32 s51, s51, 0xfff")
    A("    s_cselect_b32 s51, 16, 0")
    A("    s_add_u32 s50, s50, s51")
    A("    s_mul_i32 s50, s50, 100000")
    A("    v_mov_b32 v10, s4")
    A("    v_mov_b32 v11, s10")
    A("    v_mov_b32 v12, s14")
    A("    v_mov_b32 v13, s12")
    A("    buffer_store_dwordx4 v[10:13], v1, s[28:31], 0 offen offset:32")
A("    s_memrealtime s[44:45]")
A("    s_waitcnt lgkmcnt(0)")
A("PB_dl:")
A("    s_memrealtime s[46:47]")
A("    s_waitcnt lgkmcnt(0)")
A("    s_sub_u32 s52, s46, s44")
A("    s_cmp_lt_u32 s52, s50")
A("    s_cbranch_scc1 PB_dl")
A("PB_end:")
A("    s_endpgm")
probe = "\n".join(o) + "\n"
kd = ""
for nm in ["probea_kernel", "probeb_kernel"]:
    kd += f""".p2align 6
.amdhsa_kernel {nm}
  .amdhsa_next_free_vgpr 32
  .amdhsa_next_free_sgpr 64
  .amdhsa_accum_offset 32
  .amdhsa_group_segment_fixed_size 0
  .amdhsa_kernarg_size 48
  .amdhsa_user_sgpr_count 2
  .amdhsa_user_sgpr_kernarg_segment_ptr 1
  .amdhsa_system_sgpr_workgroup_id_x 1
.end_amdhsa_kernel
"""
m = re.search(r"; @launch (grid=\S+ block=\S+ lds=\d+)", base)
s = base.replace(m.group(0), f"; @launch kernel=probea_kernel grid=(256,1,1) block=(1,1,1) lds=0\n; @launch kernel={NAME} {m.group(1)}\n; @launch kernel=probeb_kernel grid=(1,1,1) block=(64,1,1) lds=0")
s = s.replace('.section .rodata,"a"', probe + '.section .rodata,"a"')
s = s + kd
open(sys.argv[2], "w").write(s)
```

```python
import sys, argparse
from gen1 import HEADER, NAME, f32, finish

DPP = ["row_shr:1 row_mask:0xf bank_mask:0xf bound_ctrl:0", "row_shr:2 row_mask:0xf bank_mask:0xf bound_ctrl:0",
       "row_shr:4 row_mask:0xf bank_mask:0xf bound_ctrl:0", "row_shr:8 row_mask:0xf bank_mask:0xf bound_ctrl:0",
       "row_bcast:15 row_mask:0xa bank_mask:0xf", "row_bcast:31 row_mask:0xc bank_mask:0xf"]
SPIN = 200000


def gen(wt=2, pl=10, ck=11, nn=2, ldf="nt", stf="sc1", base="x", vgpr=128, force=-1, stamps=0, dbg=0, nfirst=0, sleep=1, prio=0, fl=8, fd=2, shots=1, sh=6):
    pb = wt + 1
    st = ck + nn + 1 - (1 if nfirst else 0)
    G0 = fl + 2
    assert st <= 14 and fl < pl and fl - fd >= wt + 1
    NE = 8192
    AD = 20
    D = 24
    o = []
    A = o.append

    def stamp(k):
        if stamps:
            A(f"    s_memrealtime s[{64+2*k}:{65+2*k}]")

    A(HEADER + "; @launch grid=(256,1,1) block=(1024,1,1) lds=64")
    A('.amdgcn_target "amdgcn-amd-amdhsa--gfx950"')
    A(".text")
    A(f".globl {NAME}")
    A(".p2align 8")
    A(f".type {NAME},@function")
    A(f"{NAME}:")
    A("    s_cmp_ge_u32 s2, 256")
    A("    s_cbranch_scc1 L_end")
    A("    s_load_dwordx4 s[4:7], s[0:1], 0        ; x, g")
    A("    s_load_dwordx4 s[8:11], s[0:1], 16      ; b, out")
    A("    s_load_dwordx4 s[12:15], s[0:1], 32")
    A("    s_getreg_b32 s40, hwreg(HW_REG_XCC_ID)")
    A("    v_lshrrev_b32 v2, 6, v0")
    A("    v_and_b32 v3, 63, v0                    ; lane")
    A("    s_bfe_u32 s40, s40, 0x10002")
    A("    v_readfirstlane_b32 s36, v2")
    A("    s_lshr_b32 s3, s2, 3")
    A("    s_lshl_b32 s3, s3, 2")
    A("    s_and_b32 s32, s2, 3")
    A("    s_add_u32 s3, s3, s32")
    A("    s_lshr_b32 s42, s3, 2")
    A("    s_lshl_b32 s3, s3, 15")
    A("    v_lshl_add_u32 v1, v3, 4, s3")
    A("    s_bfe_u32 s41, s2, 0x10002")
    A("    s_mov_b32 s18, 0x10000000")
    A("    s_mov_b32 s19, 0x00020000")
    A("    s_mov_b32 s22, 0x10000000")
    A("    s_mov_b32 s23, 0x00020000")
    A(f"    s_mov_b32 s26, {0x40000000 if stamps else 0x20000}")
    A("    s_mov_b32 s27, 0x00020000")
    A("    s_mov_b32 s30, 256")
    A("    s_mov_b32 s31, 0x00020000")
    A("    s_mov_b32 s37, 0x3f803f80")
    A("    s_mov_b32 s38, 0xffff0000")
    A("    s_mov_b32 s33, s36")
    A("    v_lshlrev_b32 v18, 4, v3                ; lane*16")
    A("    s_lshl_b32 s44, s2, 3")
    A("    v_mov_b32 v19, s44")
    A("    s_waitcnt lgkmcnt(0)")
    A("    s_mov_b32 s16, s4")
    A("    s_mov_b32 s17, s5")
    A("    s_mov_b32 s20, s10")
    A("    s_mov_b32 s21, s11")
    A("    s_mov_b32 s24, s14")
    A("    s_mov_b32 s25, s15")
    A("    s_mov_b32 s28, s12")
    A("    s_mov_b32 s29, s13")
    P = 4 if base == "x" else 10
    A("    s_cmp_lt_u32 s36, 4")
    A("    s_cbranch_scc1 L_stag0")
    A("    s_lshr_b32 s45, s36, 1")
    A("    s_lshl_b32 s45, s45, 8")
    A("    s_add_u32 s45, s45, s2")
    A("    s_and_b32 s46, s45, 63")
    A("    s_lshr_b32 s45, s45, 6")
    A("    s_lshl_b32 s46, s46, 7")
    A("    s_lshl_b32 s45, s45, 14")
    A("    s_add_u32 s45, s45, s46")
    A("    s_add_u32 s45, s45, 0xc804000")
    A(f"    s_and_b32 s46, s{P}, 0x3fff")
    A("    s_sub_u32 s45, s45, s46")
    A(f"    s_add_u32 s46, s45, s{P}")
    A("    s_lshr_b32 s46, s46, 21")
    A("    s_xor_b32 s46, s46, s36")
    A("    s_and_b32 s46, s46, 1")
    A("    s_lshl_b32 s46, s46, 13")
    A("    s_add_u32 s45, s45, s46")
    A(f"    s_add_u32 s54, s{P}, s45")
    A(f"    s_addc_u32 s55, s{P+1}, 0")
    A("    s_cmp_lg_u32 s36, 13")
    A("    s_cbranch_scc1 L_h0")
    A("    v_mov_b32 v4, 0")
    A("    ds_write_b32 v4, v4")
    A("L_h0:")
    A("    s_memtime s[58:59]")
    A("    s_waitcnt lgkmcnt(0)")
    A("    s_load_dword s47, s[54:55], 0")
    A("    s_xor_b32 s56, s54, 128")
    A("    s_mov_b32 s57, s55")
    A("    s_cmp_lg_u32 s36, 14")
    A("    s_cbranch_scc1 L_h1")
    A("    v_mov_b32 v4, -1")
    A("    v_mov_b32 v5, -1")
    A("    v_lshl_add_u32 v6, v3, 11, v19")
    A("    buffer_store_dwordx2 v[4:5], v6, s[24:27], 0 offen sc1")
    A("L_h1:")
    for t in range(wt):
        A("    s_barrier")
    A("    s_waitcnt lgkmcnt(0)")
    A("    s_memtime s[48:49]")
    A("    s_waitcnt lgkmcnt(0)")
    if shots == 2:
        A("    s_load_dword s47, s[56:57], 0")
        A("    s_waitcnt lgkmcnt(0)")
        A("    s_memtime s[50:51]")
        A("    s_waitcnt lgkmcnt(0)")
    if dbg == 2:
        A("    v_mov_b32 v4, s58")
        A("    v_mov_b32 v5, s48")
        A("    v_mov_b32 v6, s50")
        A("    s_getreg_b32 s46, hwreg(HW_REG_XCC_ID)")
        A(f"    s_bfe_u32 s47, s{P}, 0x10015")
        A("    s_lshl_b32 s47, s47, 8")
        A("    s_or_b32 s46, s46, s47")
        A("    v_mov_b32 v7, s46")
        A("    s_lshl_b32 s46, s2, 4")
        A("    s_add_u32 s46, s46, s36")
        A("    s_lshl_b32 s46, s46, 4")
        A("    v_mov_b32 v8, s46")
        A("    s_mov_b32 s26, 0x40000000")
        A("    s_mov_b32 s46, 0x20000000")
        A("    s_mov_b64 exec, 1")
        A("    buffer_store_dwordx4 v[4:7], v8, s[24:27], s46 offen")
        A("    s_mov_b64 exec, -1")
    if shots == 2:
        A("    s_sub_u32 s46, s50, s48")
    else:
        A("    s_sub_u32 s46, s48, s58")
    A("    s_sub_u32 s47, 0, s46")
    A("    s_bitcmp1_b32 s36, 0")
    A("    s_cselect_b32 s46, s47, s46")
    A("    v_mov_b32 v4, s46")
    A("    v_mov_b32 v5, 0")
    A("    s_mov_b64 exec, 1")
    A("    ds_add_u32 v5, v4")
    A("    s_mov_b64 exec, -1")
    A("    s_waitcnt vmcnt(0) lgkmcnt(0)")
    A(f"    s_sub_u32 s39, s36, {wt + 1}")
    A("    s_cmp_lg_u32 s36, 15")
    A("    s_cbranch_scc1 L_stag")
    A("    s_barrier")
    A("    v_mov_b32 v5, 0")
    A("    ds_read_b32 v4, v5")
    A("    s_waitcnt lgkmcnt(0)")
    A("    v_readfirstlane_b32 s46, v4")
    A(f"    s_ashr_i32 s46, s46, {sh}")
    A("    s_min_i32 s46, s46, 31")
    A("    s_max_i32 s46, s46, -31")
    A("    s_sub_i32 s47, 0, s46")
    A("    s_cmp_eq_u32 s40, 0")
    A("    s_cselect_b32 s46, s46, s47")
    A("    s_add_i32 s46, s46, 0xa0")
    A("    s_lshl_b32 s47, s40, 6")
    A("    s_or_b32 s46, s46, s47")
    A("    s_and_b32 s47, s2, 3")
    A("    s_lshl_b32 s47, s47, 3")
    A("    s_lshl_b32 s46, s46, s47")
    A("    v_mov_b32 v4, s46")
    A("    s_and_b32 s46, s2, 0xfc")
    A("    v_mov_b32 v5, s46")
    A("    s_mov_b64 exec, 1")
    A("    buffer_atomic_or v4, v5, s[28:31], 0 offen sc1")
    A("    s_mov_b64 exec, -1")
    for t in range(wt + 1, fl - fd):
        A("    s_barrier")
    A("    v_lshlrev_b32 v6, 2, v3")
    A("    buffer_load_dword v4, v6, s[28:31], 0 offen sc1")
    for t in range(fd):
        A("    s_barrier")
    A(f"    s_mov_b32 s46, {SPIN}")
    A("    s_mov_b32 s45, 0x80808080")
    A("L_flags:")
    A("    s_waitcnt vmcnt(0)")
    A("    v_and_b32 v5, s45, v4")
    A("    v_cmp_ne_u32 vcc, s45, v5")
    A("    s_cbranch_vccz L_flagsok")
    A("    s_sleep 8")
    A("    buffer_load_dword v4, v6, s[28:31], 0 offen sc1")
    A("    s_sub_u32 s46, s46, 1")
    A("    s_cmp_lg_u32 s46, 0")
    A("    s_cbranch_scc1 L_flags")
    A("    s_waitcnt vmcnt(0)")
    A("L_flagsok:")
    A("    v_and_b32 v5, 0x3f3f3f3f, v4")
    A("    v_sad_u8 v5, v5, 0, 0")
    A("    s_lshr_b32 s45, s2, 2")
    A("    s_xor_b32 s45, s45, 1")
    for ctl in DPP:
        A("    s_nop 1")
        A(f"    v_add_u32_dpp v5, v5, v5 {ctl}")
    A("    v_readlane_b32 s46, v4, s45")
    A("    v_readlane_b32 s44, v5, 63")
    A("    s_add_u32 s47, s47, 6")
    A("    s_lshr_b32 s46, s46, s47")
    A("    s_and_b32 s46, s46, 1")
    if dbg:
        A("    s_cmp_lg_u32 s2, 0")
        A("    s_cbranch_scc1 L_nodbg")
        A("    v_mov_b32 v12, s44")
        A("    v_mov_b32 v13, 0x1fffc")
        A("    s_mov_b32 s26, 0x40000000")
        A("    s_mov_b32 s45, 0x20000000")
        A("    buffer_store_dword v12, v13, s[24:27], s45 offen")
        A("L_nodbg:")
    A("    s_cmp_gt_u32 s44, 8192")
    A("    s_cselect_b32 s44, 1, 0")
    if force >= 0:
        A(f"    s_bfe_u32 s44, s{P}, 0x10015")
        A(f"    s_xor_b32 s44, s44, {force}")
    A("    s_xor_b32 s44, s44, s40")
    A("    s_cmp_lg_u32 s46, s40")
    A("    s_cselect_b32 s44, s44, s41")
    A("    s_lshl_b32 s44, s44, 13")
    A("    v_mov_b32 v12, s44")
    A("    v_mov_b32 v13, 0")
    A("    ds_write_b32 v13, v12 offset:4")
    A("    s_waitcnt lgkmcnt(0)")
    A(f"    s_mov_b32 s39, {14 - fl}")
    A("    s_branch L_stag")
    A("L_stag0:")
    A("    s_sub_u32 s39, s36, 1")
    A("    s_cbranch_scc1 L_pre")
    A("L_stag:")
    A("    s_cmp_eq_u32 s39, 0")
    A("    s_cbranch_scc1 L_pre")
    A("    s_barrier")
    A("    s_sub_u32 s39, s39, 1")
    A("    s_branch L_stag")
    A("L_pre:")
    A("    s_lshl_b32 s34, s33, 22")
    A(f"    s_cmp_ge_u32 s33, {G0}")
    A("    s_cbranch_scc1 L_local")
    A("    s_lshl_b32 s44, s41, 13")
    A(f"    v_add_u32 v{AD}, s44, v1")
    A(f"    v_add_u32 v{AD+1}, 0x1000, v{AD}")
    A(f"    v_xor_b32 v{AD+2}, 0x6000, v{AD}")
    A(f"    v_xor_b32 v{AD+3}, 0x6000, v{AD+1}")
    A("    s_cmp_eq_u32 s33, 0")
    A("    s_cbranch_scc1 L_t0")
    A("    s_branch L_prebar")
    A("L_local:")
    A("    v_mov_b32 v4, 0")
    A("    ds_read_b32 v4, v4 offset:4")
    for b in range(2):
        if b:
            A("    v_add_u32 v5, 0x1000, v1")
        else:
            A("    v_mov_b32 v5, v1")
        A(f"    v_add_u32 v6, s{P}, v5")
        A("    v_lshrrev_b32 v7, 8, v6")
        A("    v_xor_b32 v6, v6, v7")
        if b == 0:
            A("    s_waitcnt lgkmcnt(0)")
        A("    v_xor_b32 v6, v6, v4")
        A("    v_and_b32 v6, 0x2000, v6")
        A(f"    v_add_u32 v{AD+b}, v5, v6")
        A(f"    v_add_u32 v{AD+2+b}, 0x4000, v{AD+b}")
    A("L_prebar:")
    A("    s_barrier")
    A("L_t0:")
    for t in range(15):
        if t == 0:
            stamp(0)
            for i in range(16):
                v = D + 4 * i
                A(f"    buffer_load_dwordx4 v[{v}:{v+3}], v{AD + i // 4}, s[16:19], s34 offen offset:{(i % 4) * 1024} {ldf}".rstrip())
            stamp(1)
        if t == wt:
            A("    s_waitcnt vmcnt(0)")
            stamp(2)
        if t == pb:
            if prio:
                A(f"    s_setprio {prio}")
            for r in range(4, 12):
                A(f"    v_mov_b32 v{r}, 0")
            for i in range(16):
                for j in range(4):
                    A(f"    v_dot2c_f32_bf16 v{4+j}, s37, v{D+4*i+j}")
                for j in range(4):
                    A(f"    v_dot2c_f32_bf16 v{8+j}, v{D+4*i+j}, v{D+4*i+j}")
            A("    s_lshl_b32 s35, s33, 11")
            A("    s_nop 1")
            A("    v_add_f32 v4, v4, v5")
            A("    v_add_f32 v6, v6, v7")
            A("    v_cvt_f64_f32 v[12:13], v8")
            A("    v_add_f32 v4, v4, v6")
            A("    v_cvt_f64_f32 v[6:7], v9")
            A("    v_cvt_f64_f32 v[8:9], v10")
            A("    v_cvt_f64_f32 v[10:11], v11")
            A("    v_add_f64 v[6:7], v[6:7], v[12:13]")
            A("    v_add_f64 v[8:9], v[8:9], v[10:11]")
            A("    v_add_f64 v[6:7], v[6:7], v[8:9]")
            for ctl in DPP:
                A("    s_nop 1")
                A(f"    v_mov_b32_dpp v8, v6 {ctl}")
                A(f"    v_mov_b32_dpp v9, v7 {ctl}")
                A(f"    v_add_f32_dpp v4, v4, v4 {ctl}")
                A("    v_add_f64 v[6:7], v[6:7], v[8:9]")
            A(f"    v_mul_f32 v4, 0x{f32(1.0/NE):08x}, v4")
            A("    v_cvt_f64_f32 v[10:11], v4")
            A(f"    v_ldexp_f64 v[6:7], v[6:7], -13")
            A("    v_fma_f64 v[6:7], -v[10:11], v[10:11], v[6:7]")
            A("    v_cvt_f32_f64 v5, v[6:7]")
            A("    v_and_b32 v5, 0x7fffffff, v5")
            A("    s_mov_b32 exec_lo, 0")
            A("    s_mov_b32 exec_hi, 0x80000000")
            A("    buffer_store_dwordx2 v[4:5], v19, s[24:27], s35 offen sc1")
            A("    s_mov_b64 exec, -1")
            if prio:
                A("    s_setprio 0")
            stamp(3)
        if t == pb + 1:
            A("    s_and_b32 s44, s33, 31")
            A("    s_lshl_b32 s44, s44, 5")
            A("    s_add_u32 s44, s44, s42                 ; channel")
            A("    s_lshl_b32 s44, s44, 1")
            A("    s_and_b32 s44, s44, 0x7fc")
            A("    s_load_dword s52, s[6:7], s44")
            A("    s_load_dword s53, s[8:9], s44")
        if t == pl:
            A("    buffer_load_dwordx4 v[4:7], v18, s[24:27], s35 offen sc1")
            A("    buffer_load_dwordx4 v[8:11], v18, s[24:27], s35 offen offset:1024 sc1")
        if t == ck:
            A(f"    s_mov_b32 s46, {SPIN}")
            A("L_poll:")
            A("    s_waitcnt vmcnt(0) lgkmcnt(0)")
            A("    v_or_b32 v12, v5, v7")
            A("    v_or3_b32 v12, v12, v9, v11")
            A("    v_cmp_gt_i32 vcc, 0, v12")
            A("    s_cbranch_vccz L_polled")
            if sleep:
                A(f"    s_sleep {sleep}")
            A("    buffer_load_dwordx4 v[4:7], v18, s[24:27], s35 offen sc1")
            A("    buffer_load_dwordx4 v[8:11], v18, s[24:27], s35 offen offset:1024 sc1")
            A("    s_sub_u32 s46, s46, 1")
            A("    s_cmp_lg_u32 s46, 0")
            A("    s_cbranch_scc1 L_poll")
            A("    s_waitcnt vmcnt(0)")
            A("L_polled:")
            stamp(4)
            if stamps:
                A("    s_mov_b32 s80, s46")
            A("    v_readfirstlane_b32 s44, v4")
            A("    s_bitcmp1_b32 s42, 0")
            A("    s_cselect_b32 s45, 0, 16")
            A("    v_subrev_f32 v4, s44, v4")
            A("    v_subrev_f32 v6, s44, v6")
            A("    v_subrev_f32 v8, s44, v8")
            A("    v_subrev_f32 v10, s44, v10")
            A("    v_fmac_f32 v5, v4, v4")
            A("    v_fmac_f32 v7, v6, v6")
            A("    v_fmac_f32 v9, v8, v8")
            A("    v_fmac_f32 v11, v10, v10")
            A("    v_add_f32 v4, v4, v6")
            A("    v_add_f32 v8, v8, v10")
            A("    v_add_f32 v5, v5, v7")
            A("    v_add_f32 v9, v9, v11")
            A("    v_add_f32 v4, v4, v8")
            A("    v_add_f32 v5, v5, v9")
            for ctl in DPP:
                A("    s_nop 0")
                A(f"    v_add_f32_dpp v4, v4, v4 {ctl}")
                A(f"    v_add_f32_dpp v5, v5, v5 {ctl}")
            A("    s_lshl_b32 s52, s52, s45")
            A("    s_lshl_b32 s53, s53, s45")
            A("    v_readlane_b32 s46, v4, 63")
            A("    v_readlane_b32 s47, v5, 63")
            A("    s_and_b32 s52, s52, s38")
            A("    s_and_b32 s53, s53, s38")
            A(f"    v_mov_b32 v6, 0x{f32(1.0/256):08x}")
            A("    v_mul_f32 v4, s46, v6")
            A("    v_mul_f32 v5, s47, v6")
            A("    v_fma_f32 v5, -v4, v4, v5")
            A("    v_add_f32 v6, s44, v4                   ; mean")
            A("    v_cvt_pk_bf16_f32 v7, v6, v6")
            A("    v_lshlrev_b32 v7, 16, v7")
            A("    v_sub_f32 v6, s44, v7")
            A("    v_add_f32 v6, v6, v4")
            A("    v_fmac_f32 v5, v6, v6")
            A("    v_cvt_pk_bf16_f32 v5, v5, v5")
            A("    v_lshlrev_b32 v5, 16, v5")
            A(f"    v_add_f32 v5, 0x{f32(1e-5):08x}, v5")
            A("    v_cvt_pk_bf16_f32 v5, v5, v5")
            A("    v_lshlrev_b32 v5, 16, v5")
            A("    v_sqrt_f32 v5, v5")
            A("    s_nop 0")
            A("    v_cvt_pk_bf16_f32 v5, v5, v5")
            A("    v_lshlrev_b32 v5, 16, v5")
            A("    v_rcp_f32 v5, v5")
            A("    s_nop 0")
            A("    v_mul_f32 v4, s52, v5                   ; A = g / std")
            A("    v_fma_f32 v6, -v7, v4, s53              ; B = b - mean*A")
            A("    v_mov_b32 v5, v4")
            A("    v_mov_b32 v7, v6")
        n0 = ck + (0 if nfirst else 1)
        if n0 <= t < n0 + nn:
            u = t - n0
            for i in range(u * 16 // nn, (u + 1) * 16 // nn):
                for j in range(4):
                    r = D + 4 * i + j
                    A(f"    v_lshlrev_b32 v{8+2*j}, 16, v{r}")
                    A(f"    v_and_b32 v{9+2*j}, s38, v{r}")
                for j in range(4):
                    A(f"    v_pk_fma_f32 v[{8+2*j}:{9+2*j}], v[{8+2*j}:{9+2*j}], v[4:5], v[6:7]")
                for j in range(4):
                    A(f"    v_cvt_pk_bf16_f32 v{D+4*i+j}, v{8+2*j}, v{9+2*j}")
        if t == st:
            stamp(5)
            for i in range(16):
                v = D + 4 * i
                A(f"    buffer_store_dwordx4 v[{v}:{v+3}], v{AD + i // 4}, s[20:23], s34 offen offset:{(i % 4) * 1024} {stf}".rstrip())
            if stamps:
                stamp(6)
                A("    s_waitcnt lgkmcnt(0)")
                for k in range(7):
                    A(f"    v_mov_b32 v{4+k}, s{64+2*k}")
                A("    v_mov_b32 v11, s80")
                A("    s_lshl_b32 s44, s33, 8")
                A("    s_add_u32 s44, s44, s2")
                A("    s_lshl_b32 s44, s44, 5")
                A("    s_add_u32 s44, s44, 0x20020000")
                A("    v_mov_b32 v12, s44")
                A("    s_mov_b64 exec, 1")
                A("    buffer_store_dwordx4 v[4:7], v12, s[24:27], 0 offen")
                A("    buffer_store_dwordx4 v[8:11], v12, s[24:27], 0 offen offset:16")
                A("    s_mov_b64 exec, -1")
            A("    s_add_u32 s33, s33, 16")
            A("    s_cmp_ge_u32 s33, 64")
            A("    s_cbranch_scc1 L_end")
        A("    s_barrier")
    A("    s_branch L_pre")
    A("L_end:")
    A("    s_endpgm")
    return finish(o, vgpr, 84 if (stamps or dbg) else 64)


if __name__ == "__main__":
    p = argparse.ArgumentParser()
    for k, v in dict(wt=2, pl=10, ck=11, nn=2, vgpr=128, force=-1, stamps=0, dbg=0, nfirst=0, sleep=1, prio=0, fl=8, fd=2, shots=1, sh=6).items():
        p.add_argument("--" + k, type=int, default=v)
    p.add_argument("--ldf", default="nt")
    p.add_argument("--stf", default="sc1")
    p.add_argument("--base", default="x")
    p.add_argument("-o", default="-")
    a = vars(p.parse_args())
    out = a.pop("o")
    open(out, "w").write(gen(**a))
```

```python
import sys, re
from gen1 import NAME
base = open(sys.argv[1]).read()
which = sys.argv[3]
o = []
A = o.append
def pro(name, n, end):
    A(".p2align 8")
    A(f".globl {name}")
    A(f".type {name},@function")
    A(f"{name}:")
    A(f"    s_cmp_ge_u32 s2, {n}")
    A(f"    s_cbranch_scc1 {end}")
    A("    s_load_dwordx4 s[4:7], s[0:1], 0")
    A("    s_load_dwordx4 s[8:11], s[0:1], 16")
    A("    s_load_dwordx4 s[12:15], s[0:1], 32")
    A("    s_waitcnt lgkmcnt(0)")
    for r, (lo, hi, sz) in {28: (12, 13, 256), 24: (14, 15, 0x40000000)}.items():
        A(f"    s_mov_b32 s{r}, s{lo}")
        A(f"    s_mov_b32 s{r+1}, s{hi}")
        A(f"    s_mov_b32 s{r+2}, {sz}")
        A(f"    s_mov_b32 s{r+3}, 0x00020000")
pro("probea_kernel", 256, "PA_end")
p, sz, sh = {"x": (4, 0x10000000, 20), "out": (10, 0x10000000, 20), "ws": (14, 0x40000000, 22)}[which]
A(f"    s_mov_b32 s16, s{p}")
A(f"    s_mov_b32 s17, s{p+1}")
A(f"    s_mov_b32 s18, {sz}")
A("    s_mov_b32 s19, 0x00020000")
A(f"    s_lshl_b32 s41, s2, {sh}")
A("    s_add_u32 s41, s41, 0x40000")
A("    v_mov_b32 v1, s41")
A("    buffer_load_dword v2, v1, s[16:19], 0 offen offset:3968 nt")
A("    s_waitcnt vmcnt(0)")
A("    s_mov_b32 s50, 0")
for j in range(16):
    A(f"    v_add_u32 v3, {j * 0x6100 + 0x1000}, v1")
    A("    s_memtime s[44:45]")
    A("    s_waitcnt lgkmcnt(0)")
    A("    buffer_load_dword v2, v3, s[16:19], 0 offen nt")
    A("    s_waitcnt vmcnt(0)")
    A("    s_memtime s[46:47]")
    A("    s_waitcnt lgkmcnt(0)")
    A("    s_sub_u32 s42, s46, s44")
    A("    s_cmp_lt_u32 s42, 560")
    A("    s_addc_u32 s50, s50, 0")
A("    v_mov_b32 v2, s50")
A("    s_lshl_b32 s52, s2, 2")
A("    s_add_u32 s52, s52, 0x30000000")
A("    v_mov_b32 v1, s52")
A("    buffer_store_dword v2, v1, s[24:27], 0 offen")
A("PA_end:")
A("    s_endpgm")
pro("probeb_kernel", 1, "PB_end")
A("    v_lshlrev_b32 v1, 4, v0")
A("    v_add_u32 v1, 0x30000000, v1")
A("    buffer_load_dwordx4 v[4:7], v1, s[24:27], 0 offen")
A("    s_waitcnt vmcnt(0)")
A("    v_add_u32 v4, v4, v5")
A("    v_add_u32 v6, v6, v7")
A("    v_add_u32 v4, v4, v6")
for c in ["row_shr:1", "row_shr:2", "row_shr:4", "row_shr:8"]:
    A("    s_nop 1")
    A(f"    v_add_u32_dpp v4, v4, v4 {c} row_mask:0xf bank_mask:0xf bound_ctrl:0")
A("    s_nop 1")
A("    s_mov_b32 s50, 0")
for q, m in enumerate([1, 5, 25, 125]):
    A(f"    v_readlane_b32 s52, v4, {16*q+15}")
    A("    s_nop 2")
    A(f"    v_mov_b32 v{10+q}, s52")
    A("    s_add_u32 s52, s52, 64")
    A("    s_lshr_b32 s52, s52, 7")
    A("    s_min_u32 s52, s52, 4")
    A(f"    s_mul_i32 s52, s52, {m * 1000}")
    A("    s_add_u32 s50, s50, s52")
A("    v_mov_b32 v1, 0")
A("    s_mov_b64 exec, 1")
A("    buffer_store_dwordx4 v[10:13], v1, s[28:31], 0 offen")
A("    s_memrealtime s[44:45]")
A("    s_waitcnt lgkmcnt(0)")
A("PB_dl:")
A("    s_memrealtime s[46:47]")
A("    s_waitcnt lgkmcnt(0)")
A("    s_sub_u32 s52, s46, s44")
A("    s_cmp_lt_u32 s52, s50")
A("    s_cbranch_scc1 PB_dl")
A("PB_end:")
A("    s_endpgm")
probe = "\n".join(o) + "\n"
kd = ""
for nm in ["probea_kernel", "probeb_kernel"]:
    kd += f""".p2align 6
.amdhsa_kernel {nm}
  .amdhsa_next_free_vgpr 32
  .amdhsa_next_free_sgpr 64
  .amdhsa_accum_offset 32
  .amdhsa_group_segment_fixed_size 0
  .amdhsa_kernarg_size 48
  .amdhsa_user_sgpr_count 2
  .amdhsa_user_sgpr_kernarg_segment_ptr 1
  .amdhsa_system_sgpr_workgroup_id_x 1
.end_amdhsa_kernel
"""
m = re.search(r"; @launch (grid=\S+ block=\S+ lds=\d+)", base)
s = base.replace(m.group(0), f"; @launch kernel=probea_kernel grid=(256,1,1) block=(1,1,1) lds=0\n; @launch kernel={NAME} {m.group(1)}\n; @launch kernel=probeb_kernel grid=(1,1,1) block=(64,1,1) lds=0")
s = s.replace('.section .rodata,"a"', probe + '.section .rodata,"a"')
s = s + kd
open(sys.argv[2], "w").write(s)
```

```python
import sys, re
from gen1 import NAME
base = open(sys.argv[1]).read()
g, k = int(sys.argv[3]), int(sys.argv[4])
o = []
A = o.append
A(".p2align 8")
A(".globl rep_kernel")
A(".type rep_kernel,@function")
A("rep_kernel:")
A("    s_cmp_ge_u32 s2, 1")
A("    s_cbranch_scc1 R_end")
A("    s_load_dwordx4 s[12:15], s[0:1], 32")
A("    s_waitcnt lgkmcnt(0)")
for r, (lo, hi, sz) in {28: (12, 13, 256), 24: (14, 15, 0x40000000)}.items():
    A(f"    s_mov_b32 s{r}, s{lo}")
    A(f"    s_mov_b32 s{r+1}, s{hi}")
    A(f"    s_mov_b32 s{r+2}, {sz}")
    A(f"    s_mov_b32 s{r+3}, 0x00020000")
A("    v_lshlrev_b32 v1, 5, v0")
DP = ["row_shr:1 row_mask:0xf", "row_shr:2 row_mask:0xf", "row_shr:4 row_mask:0xf", "row_shr:8 row_mask:0xf", "row_bcast:15 row_mask:0xa", "row_bcast:31 row_mask:0xc"]
def red(gg, kk, op, dst):
    for q in range(4):
        A(f"    s_mov_b32 s40, {0x20020000 + gg * 8192 + q * 2048 + kk * 4}")
        A(f"    buffer_load_dword v{4+q}, v1, s[24:27], s40 offen")
    A("    s_waitcnt vmcnt(0)")
    A(f"    v_{op}_u32 v4, v4, v5")
    A(f"    v_{op}_u32 v6, v6, v7")
    A(f"    v_{op}_u32 v4, v4, v6")
    for c in DP:
        A("    s_nop 1")
        A(f"    v_{op}_u32_dpp v4, v4, v4 {c} bank_mask:0xf")
    A("    s_nop 1")
    A(f"    v_readlane_b32 s{dst}, v4, 63")
red(0, int(sys.argv[5]) if len(sys.argv) > 5 else 0, "min", 50)
pts = [(0, 0), (0, 3), (8, 0), (9, 0), (16, 0), (24, 0), (32, 0), (40, 0), (48, 0), (56, 0), (63, 0), (63, 6)]
for n, (gg, kk) in enumerate(pts):
    red(gg, kk, "max", 51)
    A("    s_sub_u32 s51, s51, s50")
    A(f"    v_mov_b32 v{10+n}, s51")
red(g, k, sys.argv[7] if len(sys.argv) > 7 else "max", 51)
A("    s_sub_u32 s50, s51, s50")
A("    s_min_u32 s50, s50, 12000")
A(f"    s_mul_i32 s50, s50, {10 * (int(sys.argv[6]) if len(sys.argv) > 6 else 1)}")
A("    s_add_u32 s50, s50, 500")
A("    s_mul_hi_u32 s50, s50, 4294968")
A("    s_mul_i32 s50, s50, 20000")
A("    v_mov_b32 v1, 0")
A("    s_mov_b64 exec, 1")
for n in range(len(pts)):
    A(f"    buffer_store_dword v{10+n}, v1, s[28:31], 0 offen offset:{4*n}")
A("    s_memrealtime s[44:45]")
A("    s_waitcnt lgkmcnt(0)")
A("R_dl:")
A("    s_memrealtime s[46:47]")
A("    s_waitcnt lgkmcnt(0)")
A("    s_sub_u32 s52, s46, s44")
A("    s_cmp_lt_u32 s52, s50")
A("    s_cbranch_scc1 R_dl")
A("R_end:")
A("    s_endpgm")
kd = """.p2align 6
.amdhsa_kernel rep_kernel
  .amdhsa_next_free_vgpr 32
  .amdhsa_next_free_sgpr 64
  .amdhsa_accum_offset 32
  .amdhsa_group_segment_fixed_size 0
  .amdhsa_kernarg_size 48
  .amdhsa_user_sgpr_count 2
  .amdhsa_user_sgpr_kernarg_segment_ptr 1
  .amdhsa_system_sgpr_workgroup_id_x 1
.end_amdhsa_kernel
"""
m = re.search(r"; @launch (grid=\S+ block=\S+ lds=\d+)", base)
s = base.replace(m.group(0), f"; @launch kernel={NAME} {m.group(1)}\n; @launch kernel=rep_kernel grid=(1,1,1) block=(64,1,1) lds=0")
s = s.replace('.section .rodata,"a"', "\n".join(o) + "\n" + '.section .rodata,"a"')
s = s + kd
open(sys.argv[2], "w").write(s)
```

```python
import sys, argparse
from gen1 import HEADER, NAME, f32, finish

DPP = ["row_shr:1 row_mask:0xf bank_mask:0xf bound_ctrl:0", "row_shr:2 row_mask:0xf bank_mask:0xf bound_ctrl:0",
       "row_shr:4 row_mask:0xf bank_mask:0xf bound_ctrl:0", "row_shr:8 row_mask:0xf bank_mask:0xf bound_ctrl:0",
       "row_bcast:15 row_mask:0xa bank_mask:0xf", "row_bcast:31 row_mask:0xc bank_mask:0xf"]
SPIN = 200000


def gen(wt=2, pl=10, ck=11, nn=2, ldf="nt", stf="sc1", base="x", vgpr=128, force=-1, stamps=0, dbg=0, nfirst=0, sleep=1, prio=0, fl=8, fd=2, shots=2, sh=5, t0=400):
    pb = wt + 1
    st = ck + nn + 1 - (1 if nfirst else 0)
    G0 = fl + 2
    assert st <= 14 and fl < pl and fl - fd >= wt + 1
    NE = 8192
    AD = 20
    D = 24
    o = []
    A = o.append

    def stamp(k):
        if stamps:
            A(f"    s_memrealtime s[{64+2*k}:{65+2*k}]")

    A(HEADER + "; @launch grid=(256,1,1) block=(1024,1,1) lds=64")
    A('.amdgcn_target "amdgcn-amd-amdhsa--gfx950"')
    A(".text")
    A(f".globl {NAME}")
    A(".p2align 8")
    A(f".type {NAME},@function")
    A(f"{NAME}:")
    A("    s_cmp_ge_u32 s2, 256")
    A("    s_cbranch_scc1 L_end")
    A("    s_load_dwordx4 s[4:7], s[0:1], 0        ; x, g")
    A("    s_load_dwordx4 s[8:11], s[0:1], 16      ; b, out")
    A("    s_load_dwordx4 s[12:15], s[0:1], 32")
    A("    s_getreg_b32 s40, hwreg(HW_REG_XCC_ID)")
    A("    v_lshrrev_b32 v2, 6, v0")
    A("    v_and_b32 v3, 63, v0                    ; lane")
    A("    s_bfe_u32 s40, s40, 0x10002")
    A("    v_readfirstlane_b32 s36, v2")
    A("    s_lshr_b32 s3, s2, 3")
    A("    s_lshl_b32 s3, s3, 2")
    A("    s_and_b32 s32, s2, 3")
    A("    s_add_u32 s3, s3, s32")
    A("    s_lshr_b32 s42, s3, 2")
    A("    s_lshl_b32 s3, s3, 15")
    A("    v_lshl_add_u32 v1, v3, 4, s3")
    A("    s_bfe_u32 s41, s2, 0x10002")
    A("    s_mov_b32 s18, 0x10000000")
    A("    s_mov_b32 s19, 0x00020000")
    A("    s_mov_b32 s22, 0x10000000")
    A("    s_mov_b32 s23, 0x00020000")
    A(f"    s_mov_b32 s26, {0x40000000 if stamps else 0x20000}")
    A("    s_mov_b32 s27, 0x00020000")
    A("    s_mov_b32 s30, 256")
    A("    s_mov_b32 s31, 0x00020000")
    A("    s_mov_b32 s37, 0x3f803f80")
    A("    s_mov_b32 s38, 0xffff0000")
    A("    s_mov_b32 s33, s36")
    A("    v_lshlrev_b32 v18, 4, v3                ; lane*16")
    A("    s_lshl_b32 s44, s2, 3")
    A("    v_mov_b32 v19, s44")
    A("    s_waitcnt lgkmcnt(0)")
    A("    s_mov_b32 s16, s4")
    A("    s_mov_b32 s17, s5")
    A("    s_mov_b32 s20, s10")
    A("    s_mov_b32 s21, s11")
    A("    s_mov_b32 s24, s14")
    A("    s_mov_b32 s25, s15")
    A("    s_mov_b32 s28, s12")
    A("    s_mov_b32 s29, s13")
    P = 4 if base == "x" else 10
    A("    s_cmp_lt_u32 s36, 14")
    A("    s_cbranch_scc1 L_stag0")
    A("    s_cmp_eq_u32 s36, 15")
    A("    s_cbranch_scc1 L_w15")
    A("    v_mov_b32 v4, -1")
    A("    v_mov_b32 v5, -1")
    A("    v_lshl_add_u32 v6, v3, 11, v19")
    A("    buffer_store_dwordx2 v[4:5], v6, s[24:27], 0 offen sc1")
    for t in range(wt):
        A("    s_barrier")
    A("    s_waitcnt vmcnt(0)")
    A(f"    s_mov_b32 s39, {13 - wt}")
    A("    s_branch L_stag")
    A("L_w15:")
    A("    s_and_b32 s46, s2, 63")
    A("    s_lshr_b32 s45, s2, 6")
    A("    s_lshl_b32 s46, s46, 7")
    A("    s_lshl_b32 s45, s45, 14")
    A("    s_add_u32 s45, s45, s46")
    A("    s_add_u32 s45, s45, 0xc804000")
    A(f"    s_and_b32 s46, s{P}, 0x3fff")
    A("    s_sub_u32 s45, s45, s46")
    A(f"    s_add_u32 s46, s45, s{P}")
    A("    s_lshr_b32 s46, s46, 18")
    A("    s_xor_b32 s46, s46, s2")
    A("    s_and_b32 s46, s46, 8")
    A("    s_lshl_b32 s46, s46, 10")
    A("    s_add_u32 s45, s45, s46")
    A(f"    s_add_u32 s54, s{P}, s45")
    A(f"    s_addc_u32 s55, s{P+1}, 0")
    A("    s_memtime s[58:59]")
    A("    s_waitcnt lgkmcnt(0)")
    A("    s_load_dword s47, s[54:55], 0")
    for t in range(wt):
        A("    s_barrier")
    A("    s_waitcnt lgkmcnt(0)")
    A("    s_memtime s[48:49]")
    A("    s_waitcnt lgkmcnt(0)")
    if shots >= 2:
        A("    s_load_dword s47, s[54:55], 0x10000")
        A("    s_waitcnt lgkmcnt(0)")
        A("    s_memtime s[50:51]")
        A("    s_waitcnt lgkmcnt(0)")
    if shots >= 3:
        A("    s_load_dword s47, s[54:55], 0x20000")
        A("    s_waitcnt lgkmcnt(0)")
        A("    s_memtime s[56:57]")
        A("    s_waitcnt lgkmcnt(0)")
    if dbg == 2:
        A("    s_sub_u32 s46, s48, s58")
        A("    v_mov_b32 v4, s46")
        A("    s_sub_u32 s46, s50, s48")
        A("    v_mov_b32 v5, s46")
        A("    s_sub_u32 s46, s56, s50")
        A("    v_mov_b32 v6, s46")
        A("    s_getreg_b32 s46, hwreg(HW_REG_XCC_ID)")
        A(f"    s_bfe_u32 s47, s{P}, 0x10015")
        A("    s_lshl_b32 s47, s47, 8")
        A("    s_or_b32 s46, s46, s47")
        A("    v_mov_b32 v7, s46")
        A("    s_lshl_b32 s46, s2, 4")
        A("    v_mov_b32 v8, s46")
        A("    s_mov_b32 s26, 0x40000000")
        A("    s_mov_b32 s46, 0x20000000")
        A("    s_mov_b64 exec, 1")
        A("    buffer_store_dwordx4 v[4:7], v8, s[24:27], s46 offen")
        A("    s_mov_b64 exec, -1")
    A("    s_barrier")
    if shots >= 2:
        A("    s_sub_u32 s46, s50, s48")
    else:
        A("    s_sub_u32 s46, s48, s58")
    A(f"    s_sub_i32 s46, s46, {t0}")
    A(f"    s_ashr_i32 s46, s46, {sh}")
    A("    s_max_i32 s46, s46, 0")
    A("    s_min_i32 s46, s46, 63")
    A("    s_bfe_u32 s47, s2, 0x10003")
    A("    s_cmp_eq_u32 s47, s40")
    A("    s_cselect_b32 s47, 0, 63")
    A("    s_xor_b32 s46, s46, s47")
    A("    s_or_b32 s46, s46, 0x80")
    A("    s_lshl_b32 s47, s40, 6")
    A("    s_or_b32 s46, s46, s47")
    A("    s_and_b32 s47, s2, 3")
    A("    s_lshl_b32 s47, s47, 3")
    A("    s_lshl_b32 s46, s46, s47")
    A("    v_mov_b32 v4, s46")
    A("    s_and_b32 s46, s2, 0xfc")
    A("    v_mov_b32 v5, s46")
    A("    s_mov_b64 exec, 1")
    A("    buffer_atomic_or v4, v5, s[28:31], 0 offen sc1")
    A("    s_mov_b64 exec, -1")
    for t in range(wt + 1, fl - fd):
        A("    s_barrier")
    A("    v_lshlrev_b32 v6, 2, v3")
    A("    buffer_load_dword v4, v6, s[28:31], 0 offen sc1")
    for t in range(fd):
        A("    s_barrier")
    A(f"    s_mov_b32 s46, {SPIN}")
    A("    s_mov_b32 s45, 0x80808080")
    A("L_flags:")
    A("    s_waitcnt vmcnt(0)")
    A("    v_and_b32 v5, s45, v4")
    A("    v_cmp_ne_u32 vcc, s45, v5")
    A("    s_cbranch_vccz L_flagsok")
    A("    s_sleep 8")
    A("    buffer_load_dword v4, v6, s[28:31], 0 offen sc1")
    A("    s_sub_u32 s46, s46, 1")
    A("    s_cmp_lg_u32 s46, 0")
    A("    s_cbranch_scc1 L_flags")
    A("    s_waitcnt vmcnt(0)")
    A("L_flagsok:")
    A("    v_and_b32 v5, 0x3f3f3f3f, v4")
    A("    v_sad_u8 v5, v5, 0, 0")
    A("    s_lshr_b32 s45, s2, 2")
    A("    s_xor_b32 s45, s45, 1")
    for ctl in DPP:
        A("    s_nop 1")
        A(f"    v_add_u32_dpp v5, v5, v5 {ctl}")
    A("    v_readlane_b32 s46, v4, s45")
    A("    v_readlane_b32 s44, v5, 63")
    A("    s_add_u32 s47, s47, 6")
    A("    s_lshr_b32 s46, s46, s47")
    A("    s_and_b32 s46, s46, 1")
    if dbg:
        A("    s_cmp_lg_u32 s2, 0")
        A("    s_cbranch_scc1 L_nodbg")
        A("    v_mov_b32 v12, s44")
        A("    v_mov_b32 v13, 0x1fffc")
        A("    s_mov_b32 s26, 0x40000000")
        A("    s_mov_b32 s45, 0x20000000")
        A("    buffer_store_dword v12, v13, s[24:27], s45 offen")
        A("L_nodbg:")
    A("    s_cmp_gt_u32 s44, 8064")
    A("    s_cselect_b32 s44, 1, 0")
    if force >= 0:
        A(f"    s_bfe_u32 s44, s{P}, 0x10015")
        A(f"    s_xor_b32 s44, s44, {force}")
    A("    s_xor_b32 s44, s44, s40")
    A("    s_cmp_lg_u32 s46, s40")
    A("    s_cselect_b32 s44, s44, s41")
    A("    s_lshl_b32 s44, s44, 13")
    A("    v_mov_b32 v12, s44")
    A("    v_mov_b32 v13, 0")
    A("    ds_write_b32 v13, v12 offset:4")
    A("    s_waitcnt lgkmcnt(0)")
    A(f"    s_mov_b32 s39, {14 - fl}")
    A("    s_branch L_stag")
    A("L_stag0:")
    A("    s_sub_u32 s39, s36, 1")
    A("    s_cbranch_scc1 L_pre")
    A("L_stag:")
    A("    s_cmp_eq_u32 s39, 0")
    A("    s_cbranch_scc1 L_pre")
    A("    s_barrier")
    A("    s_sub_u32 s39, s39, 1")
    A("    s_branch L_stag")
    A("L_pre:")
    A("    s_lshl_b32 s34, s33, 22")
    A(f"    s_cmp_ge_u32 s33, {G0}")
    A("    s_cbranch_scc1 L_local")
    A("    s_lshl_b32 s44, s41, 13")
    A(f"    v_add_u32 v{AD}, s44, v1")
    A(f"    v_add_u32 v{AD+1}, 0x1000, v{AD}")
    A(f"    v_xor_b32 v{AD+2}, 0x6000, v{AD}")
    A(f"    v_xor_b32 v{AD+3}, 0x6000, v{AD+1}")
    A("    s_cmp_eq_u32 s33, 0")
    A("    s_cbranch_scc1 L_t0")
    A("    s_branch L_prebar")
    A("L_local:")
    A("    v_mov_b32 v4, 0")
    A("    ds_read_b32 v4, v4 offset:4")
    for b in range(2):
        if b:
            A("    v_add_u32 v5, 0x1000, v1")
        else:
            A("    v_mov_b32 v5, v1")
        A(f"    v_add_u32 v6, s{P}, v5")
        A("    v_lshrrev_b32 v7, 8, v6")
        A("    v_xor_b32 v6, v6, v7")
        if b == 0:
            A("    s_waitcnt lgkmcnt(0)")
        A("    v_xor_b32 v6, v6, v4")
        A("    v_and_b32 v6, 0x2000, v6")
        A(f"    v_add_u32 v{AD+b}, v5, v6")
        A(f"    v_add_u32 v{AD+2+b}, 0x4000, v{AD+b}")
    A("L_prebar:")
    A("    s_barrier")
    A("L_t0:")
    for t in range(15):
        if t == 0:
            stamp(0)
            for i in range(16):
                v = D + 4 * i
                A(f"    buffer_load_dwordx4 v[{v}:{v+3}], v{AD + i // 4}, s[16:19], s34 offen offset:{(i % 4) * 1024} {ldf}".rstrip())
            stamp(1)
        if t == wt:
            A("    s_waitcnt vmcnt(0)")
            stamp(2)
        if t == pb:
            if prio:
                A(f"    s_setprio {prio}")
            for r in range(4, 12):
                A(f"    v_mov_b32 v{r}, 0")
            for i in range(16):
                for j in range(4):
                    A(f"    v_dot2c_f32_bf16 v{4+j}, s37, v{D+4*i+j}")
                for j in range(4):
                    A(f"    v_dot2c_f32_bf16 v{8+j}, v{D+4*i+j}, v{D+4*i+j}")
            A("    s_lshl_b32 s35, s33, 11")
            A("    s_nop 1")
            A("    v_add_f32 v4, v4, v5")
            A("    v_add_f32 v6, v6, v7")
            A("    v_cvt_f64_f32 v[12:13], v8")
            A("    v_add_f32 v4, v4, v6")
            A("    v_cvt_f64_f32 v[6:7], v9")
            A("    v_cvt_f64_f32 v[8:9], v10")
            A("    v_cvt_f64_f32 v[10:11], v11")
            A("    v_add_f64 v[6:7], v[6:7], v[12:13]")
            A("    v_add_f64 v[8:9], v[8:9], v[10:11]")
            A("    v_add_f64 v[6:7], v[6:7], v[8:9]")
            for ctl in DPP:
                A("    s_nop 1")
                A(f"    v_mov_b32_dpp v8, v6 {ctl}")
                A(f"    v_mov_b32_dpp v9, v7 {ctl}")
                A(f"    v_add_f32_dpp v4, v4, v4 {ctl}")
                A("    v_add_f64 v[6:7], v[6:7], v[8:9]")
            A(f"    v_mul_f32 v4, 0x{f32(1.0/NE):08x}, v4")
            A("    v_cvt_f64_f32 v[10:11], v4")
            A(f"    v_ldexp_f64 v[6:7], v[6:7], -13")
            A("    v_fma_f64 v[6:7], -v[10:11], v[10:11], v[6:7]")
            A("    v_cvt_f32_f64 v5, v[6:7]")
            A("    v_and_b32 v5, 0x7fffffff, v5")
            A("    s_mov_b32 exec_lo, 0")
            A("    s_mov_b32 exec_hi, 0x80000000")
            A("    buffer_store_dwordx2 v[4:5], v19, s[24:27], s35 offen sc1")
            A("    s_mov_b64 exec, -1")
            if prio:
                A("    s_setprio 0")
            stamp(3)
        if t == pb + 1:
            A("    s_and_b32 s44, s33, 31")
            A("    s_lshl_b32 s44, s44, 5")
            A("    s_add_u32 s44, s44, s42                 ; channel")
            A("    s_lshl_b32 s44, s44, 1")
            A("    s_and_b32 s44, s44, 0x7fc")
            A("    s_load_dword s52, s[6:7], s44")
            A("    s_load_dword s53, s[8:9], s44")
        if t == pl:
            A("    buffer_load_dwordx4 v[4:7], v18, s[24:27], s35 offen sc1")
            A("    buffer_load_dwordx4 v[8:11], v18, s[24:27], s35 offen offset:1024 sc1")
        if t == ck:
            A(f"    s_mov_b32 s46, {SPIN}")
            A("L_poll:")
            A("    s_waitcnt vmcnt(0) lgkmcnt(0)")
            A("    v_or_b32 v12, v5, v7")
            A("    v_or3_b32 v12, v12, v9, v11")
            A("    v_cmp_gt_i32 vcc, 0, v12")
            A("    s_cbranch_vccz L_polled")
            if sleep:
                A(f"    s_sleep {sleep}")
            A("    buffer_load_dwordx4 v[4:7], v18, s[24:27], s35 offen sc1")
            A("    buffer_load_dwordx4 v[8:11], v18, s[24:27], s35 offen offset:1024 sc1")
            A("    s_sub_u32 s46, s46, 1")
            A("    s_cmp_lg_u32 s46, 0")
            A("    s_cbranch_scc1 L_poll")
            A("    s_waitcnt vmcnt(0)")
            A("L_polled:")
            stamp(4)
            if stamps:
                A("    s_mov_b32 s80, s46")
            A("    v_readfirstlane_b32 s44, v4")
            A("    s_bitcmp1_b32 s42, 0")
            A("    s_cselect_b32 s45, 0, 16")
            A("    v_subrev_f32 v4, s44, v4")
            A("    v_subrev_f32 v6, s44, v6")
            A("    v_subrev_f32 v8, s44, v8")
            A("    v_subrev_f32 v10, s44, v10")
            A("    v_fmac_f32 v5, v4, v4")
            A("    v_fmac_f32 v7, v6, v6")
            A("    v_fmac_f32 v9, v8, v8")
            A("    v_fmac_f32 v11, v10, v10")
            A("    v_add_f32 v4, v4, v6")
            A("    v_add_f32 v8, v8, v10")
            A("    v_add_f32 v5, v5, v7")
            A("    v_add_f32 v9, v9, v11")
            A("    v_add_f32 v4, v4, v8")
            A("    v_add_f32 v5, v5, v9")
            for ctl in DPP:
                A("    s_nop 0")
                A(f"    v_add_f32_dpp v4, v4, v4 {ctl}")
                A(f"    v_add_f32_dpp v5, v5, v5 {ctl}")
            A("    s_lshl_b32 s52, s52, s45")
            A("    s_lshl_b32 s53, s53, s45")
            A("    v_readlane_b32 s46, v4, 63")
            A("    v_readlane_b32 s47, v5, 63")
            A("    s_and_b32 s52, s52, s38")
            A("    s_and_b32 s53, s53, s38")
            A(f"    v_mov_b32 v6, 0x{f32(1.0/256):08x}")
            A("    v_mul_f32 v4, s46, v6")
            A("    v_mul_f32 v5, s47, v6")
            A("    v_fma_f32 v5, -v4, v4, v5")
            A("    v_add_f32 v6, s44, v4                   ; mean")
            A("    v_cvt_pk_bf16_f32 v7, v6, v6")
            A("    v_lshlrev_b32 v7, 16, v7")
            A("    v_sub_f32 v6, s44, v7")
            A("    v_add_f32 v6, v6, v4")
            A("    v_fmac_f32 v5, v6, v6")
            A("    v_cvt_pk_bf16_f32 v5, v5, v5")
            A("    v_lshlrev_b32 v5, 16, v5")
            A(f"    v_add_f32 v5, 0x{f32(1e-5):08x}, v5")
            A("    v_cvt_pk_bf16_f32 v5, v5, v5")
            A("    v_lshlrev_b32 v5, 16, v5")
            A("    v_sqrt_f32 v5, v5")
            A("    s_nop 0")
            A("    v_cvt_pk_bf16_f32 v5, v5, v5")
            A("    v_lshlrev_b32 v5, 16, v5")
            A("    v_rcp_f32 v5, v5")
            A("    s_nop 0")
            A("    v_mul_f32 v4, s52, v5                   ; A = g / std")
            A("    v_fma_f32 v6, -v7, v4, s53              ; B = b - mean*A")
            A("    v_mov_b32 v5, v4")
            A("    v_mov_b32 v7, v6")
        n0 = ck + (0 if nfirst else 1)
        if n0 <= t < n0 + nn:
            u = t - n0
            for i in range(u * 16 // nn, (u + 1) * 16 // nn):
                for j in range(4):
                    r = D + 4 * i + j
                    A(f"    v_lshlrev_b32 v{8+2*j}, 16, v{r}")
                    A(f"    v_and_b32 v{9+2*j}, s38, v{r}")
                for j in range(4):
                    A(f"    v_pk_fma_f32 v[{8+2*j}:{9+2*j}], v[{8+2*j}:{9+2*j}], v[4:5], v[6:7]")
                for j in range(4):
                    A(f"    v_cvt_pk_bf16_f32 v{D+4*i+j}, v{8+2*j}, v{9+2*j}")
        if t == st:
            stamp(5)
            for i in range(16):
                v = D + 4 * i
                A(f"    buffer_store_dwordx4 v[{v}:{v+3}], v{AD + i // 4}, s[20:23], s34 offen offset:{(i % 4) * 1024} {stf}".rstrip())
            if stamps:
                stamp(6)
                A("    s_waitcnt lgkmcnt(0)")
                for k in range(7):
                    A(f"    v_mov_b32 v{4+k}, s{64+2*k}")
                A("    v_mov_b32 v11, s80")
                A("    s_lshl_b32 s44, s33, 8")
                A("    s_add_u32 s44, s44, s2")
                A("    s_lshl_b32 s44, s44, 5")
                A("    s_add_u32 s44, s44, 0x20020000")
                A("    v_mov_b32 v12, s44")
                A("    s_mov_b64 exec, 1")
                A("    buffer_store_dwordx4 v[4:7], v12, s[24:27], 0 offen")
                A("    buffer_store_dwordx4 v[8:11], v12, s[24:27], 0 offen offset:16")
                A("    s_mov_b64 exec, -1")
            A("    s_add_u32 s33, s33, 16")
            A("    s_cmp_ge_u32 s33, 64")
            A("    s_cbranch_scc1 L_end")
        A("    s_barrier")
    A("    s_branch L_pre")
    A("L_end:")
    A("    s_endpgm")
    return finish(o, vgpr, 84 if (stamps or dbg) else 64)


if __name__ == "__main__":
    p = argparse.ArgumentParser()
    for k, v in dict(wt=2, pl=10, ck=11, nn=2, vgpr=128, force=-1, stamps=0, dbg=0, nfirst=0, sleep=1, prio=0, fl=8, fd=2, shots=2, sh=5, t0=400).items():
        p.add_argument("--" + k, type=int, default=v)
    p.add_argument("--ldf", default="nt")
    p.add_argument("--stf", default="sc1")
    p.add_argument("--base", default="x")
    p.add_argument("-o", default="-")
    a = vars(p.parse_args())
    out = a.pop("o")
    open(out, "w").write(gen(**a))
```

```python
import sys, re
from gen1 import NAME
base = open(sys.argv[1]).read()
mode = sys.argv[3]
o = []
A = o.append
A(".p2align 8")
A(".globl rep_kernel")
A(".type rep_kernel,@function")
A("rep_kernel:")
A("    s_cmp_ge_u32 s2, 1")
A("    s_cbranch_scc1 R_end")
A("    s_load_dwordx2 s[4:5], s[0:1], 0")
A("    s_load_dwordx4 s[12:15], s[0:1], 32")
A("    s_getreg_b32 s40, hwreg(HW_REG_XCC_ID)")
A("    s_bfe_u32 s40, s40, 0x10002")
A("    s_waitcnt lgkmcnt(0)")
A("    s_mov_b32 s28, s12")
A("    s_mov_b32 s29, s13")
A("    s_mov_b32 s30, 256")
A("    s_mov_b32 s31, 0x00020000")
A("    s_load_dword s41, s[14:15], 0x6fff0 glc")
A("    s_add_u32 s6, s4, 0x4000000")
A("    s_addc_u32 s7, s5, 0")
A("    s_load_dword s47, s[6:7], 0x80000 glc")
A("    s_waitcnt lgkmcnt(0)")
A("    s_mov_b32 s50, 0")
for j in range(9):
    for h, d in ((0, 42), (1, 43)):
        A("    s_memtime s[44:45]")
        A("    s_waitcnt lgkmcnt(0)")
        A(f"    s_load_dword s48, s[6:7], {0x40000 + h * 0x2000 + j * 0x4100} glc")
        A("    s_waitcnt lgkmcnt(0)")
        A("    s_memtime s[46:47]")
        A("    s_waitcnt lgkmcnt(0)")
        A(f"    s_sub_u32 s{d}, s46, s44")
    A("    s_cmp_lt_u32 s43, s42")
    A("    s_addc_u32 s50, s50, 0")
A("    s_cmp_gt_u32 s50, 4")
A("    s_cselect_b32 s51, 1, 0")
A("    s_bfe_u32 s52, s4, 0x10015")
A("    s_xor_b32 s51, s51, s52")
A("    s_xor_b32 s51, s51, s40                 ; true c")
A("    s_sub_i32 s52, s41, 8064")
A("    s_sub_i32 s53, 0, s52")
A("    s_cmp_eq_u32 s51, 1")
A("    s_cselect_b32 s52, s52, s53             ; margin")
A("    v_mov_b32 v4, s52")
A("    v_mov_b32 v5, s50")
A("    v_mov_b32 v6, s41")
A("    v_mov_b32 v7, s51")
A("    v_mov_b32 v1, 0")
A("    s_mov_b64 exec, 1")
A("    buffer_store_dwordx4 v[4:7], v1, s[28:31], 0 offen")
if mode == "fail":
    A(f"    s_cmp_lt_i32 s52, {sys.argv[4]}")
    A("    s_cselect_b32 s50, 100000, 0")
else:
    A("    s_sub_i32 s50, 3000, s52")
    A("    s_max_i32 s50, s50, 0")
    A("    s_mul_i32 s50, s50, 100")
A("    s_memrealtime s[44:45]")
A("    s_waitcnt lgkmcnt(0)")
A("R_dl:")
A("    s_memrealtime s[46:47]")
A("    s_waitcnt lgkmcnt(0)")
A("    s_sub_u32 s52, s46, s44")
A("    s_cmp_lt_u32 s52, s50")
A("    s_cbranch_scc1 R_dl")
A("R_end:")
A("    s_endpgm")
kd = """.p2align 6
.amdhsa_kernel rep_kernel
  .amdhsa_next_free_vgpr 32
  .amdhsa_next_free_sgpr 64
  .amdhsa_accum_offset 32
  .amdhsa_group_segment_fixed_size 0
  .amdhsa_kernarg_size 48
  .amdhsa_user_sgpr_count 2
  .amdhsa_user_sgpr_kernarg_segment_ptr 1
  .amdhsa_system_sgpr_workgroup_id_x 1
.end_amdhsa_kernel
"""
m = re.search(r"; @launch (grid=\S+ block=\S+ lds=\d+)", base)
s = base.replace(m.group(0), f"; @launch kernel={NAME} {m.group(1)}\n; @launch kernel=rep_kernel grid=(1,1,1) block=(64,1,1) lds=0")
s = s.replace('.section .rodata,"a"', "\n".join(o) + "\n" + '.section .rodata,"a"')
s = s + kd
open(sys.argv[2], "w").write(s)
```

```python
import sys, argparse
from gen1 import HEADER, NAME, f32, finish

DPP = ["row_shr:1 row_mask:0xf bank_mask:0xf bound_ctrl:0", "row_shr:2 row_mask:0xf bank_mask:0xf bound_ctrl:0",
       "row_shr:4 row_mask:0xf bank_mask:0xf bound_ctrl:0", "row_shr:8 row_mask:0xf bank_mask:0xf bound_ctrl:0",
       "row_bcast:15 row_mask:0xa bank_mask:0xf", "row_bcast:31 row_mask:0xc bank_mask:0xf"]
DOC = '''; GroupNorm over 64 groups of 4 MiB, one pass over memory: x is read once, held in registers until the group's
;
;
; group G0 on a workgroup reads the address class next to it.  Which workgroup takes which slice is drawn from ticket
;
'''
SPIN = 300000
ANN = 0x40000
DYN = 0x10000
EPO = 0x40800
CTR = 0x41000
WSB = 0x70000
TAGK = 0x9e3779b9


def gen(wt=2, pl=6, pd=2, nn=1, n1=6, mf=1, g0=11, fl=7, fd=2, td=1, nq=16, spub=1, xb=3, gd=60, early=0, eth=8, early2=0, eth2=12,
        plf=0, ldf="nt", stf="sc1", vgpr=128, force=-1, stamps=0, sh=5, t0=300, mfs=0, pglc=1, dbg=0, pf=14, shots=1, pt=2, ge=0, ge2=0, dm=0xffffffff, gd1=0, dm1=0x55555555, dlf='nt', abl=0, prio=0, ldn=0, pa=0x8000, tp=0, tpm=0, g8=0, tx=0, to=0, txe=0, fuse=0, lprio=0, sprio=0, tprio=0, route=0, gdl=0, gq=0, sd=0, sdw=1, aprio=0, bump=0, hw=-1, hwg=0):
    ck = pl + pd
    st = ck + nn
    spare = 14 - td - st + fuse
    assert spare >= 0 and pl > wt + 1 + (early > 0) + (early2 > 0) and 6 <= g0 <= 15 and fl - fd >= pt + 1 and g0 >= pt + 3 + td
    NE = 8192
    D = 24
    VL = 20
    M0, M1 = 22, 23
    T = 88
    PM = 64
    SB = 72
    nk = nq // 2
    mem = 256 // nq
    lm = mem.bit_length() - 1
    o = []
    A = o.append

    def stamp(k):
        if stamps and not (stamps == 2 and k == 3):
            A(f"    s_memrealtime s[{SB+2*k}:{SB+1+2*k}]")

    A(HEADER + "; @launch grid=(256,1,1) block=(1024,1,1) lds=64")
    A(DOC.replace("G0", str(g0)).rstrip())
    A('.amdgcn_target "amdgcn-amd-amdhsa--gfx950"')
    A(".text")
    A(f".globl {NAME}")
    A(".p2align 8")
    A(f".type {NAME},@function")
    A(f"{NAME}:")
    if stamps == 2:
        A(f"    s_memrealtime s[{SB+6}:{SB+7}]")
    if dbg == 2:
        A("    s_memtime s[70:71]")
    A("    s_load_dwordx4 s[4:7], s[0:1], 0        ; x, g")
    A("    s_load_dwordx4 s[8:11], s[0:1], 16      ; b, out")
    A("    s_load_dwordx2 s[14:15], s[0:1], 40     ; ws")
    A("    s_cmp_ge_u32 s2, 256")
    A("    s_cbranch_scc1 L_end")
    A("    v_lshrrev_b32 v2, 6, v0")
    A("    v_and_b32 v3, 63, v0                    ; lane")
    A("    s_mov_b32 s18, 0x10000000")
    A("    v_readfirstlane_b32 s36, v2             ; wave")
    if pf:
        A("    s_getpc_b64 s[48:49]")
        A("L_pc:")
        A("    v_lshlrev_b32 v4, 7, v3")
        A("    v_min_u32 v4, L_last-L_pc, v4")
        A(f"    s_cmp_lg_u32 s36, {pf}")
        A("    s_cbranch_scc1 L_nopf")
        A("    global_load_dword v5, v4, s[48:49]")
        A("L_nopf:")
    A("    s_mov_b32 s19, 0x00020000")
    A("    s_mov_b32 s22, s18")
    A("    s_mov_b32 s23, 0x00020000")
    A(f"    s_mov_b32 s26, {0x40000000 if stamps else WSB}")
    A("    s_mov_b32 s27, 0x00020000")
    A("    s_mov_b32 s37, 0x3f803f80")
    A("    s_mov_b32 s38, 0xffff0000")
    A("    s_mov_b32 s39, 0")
    A("    s_mov_b32 s43, 0")
    A("    s_mov_b32 s56, 0                        ; ticket")
    A("    s_mov_b32 s33, s36                      ; group")
    A("    s_mov_b32 s34, s2")
    A(f"    v_lshlrev_b32 v{VL}, 4, v3")
    A("    s_lshr_b32 s42, s34, 3")
    A("    s_lshl_b32 s44, s42, 2")
    A("    s_and_b32 s45, s34, 3")
    A("    s_or_b32 s44, s44, s45")
    A("    s_lshl_b32 s44, s44, 15")
    A("    s_lshl_b32 s45, s33, 22")
    A("    s_or_b32 s28, s44, s45")
    A("    s_and_b32 s44, s34, 4")
    A("    s_lshl_b32 s44, s44, 11")
    A("    s_or_b32 s28, s28, s44")
    A("    s_or_b32 s29, s28, 0x1000")
    A("    s_xor_b32 s30, s28, 0x6000")
    A("    s_xor_b32 s31, s29, 0x6000")
    if mf:
        A("    v_and_b32 v6, 1, v3")
        A("    v_lshlrev_b32 v6, 4, v6")
        A("    v_mov_b32 v7, 0xffff")
        A("    v_lshlrev_b32 v6, v6, v7")
        A("    v_bfe_i32 v7, v3, 1, 1")
        A(f"    v_and_b32 v{M1}, v7, v6")
        A(f"    v_xor_b32 v{M0}, v{M1}, v6")
    A("    s_and_b32 s46, s2, 63")
    A("    s_lshr_b32 s45, s2, 6")
    A("    s_lshl_b32 s46, s46, 7")
    A("    s_lshl_b32 s45, s45, 14")
    A("    s_or_b32 s45, s45, s46")
    A("    s_and_b32 s46, s2, 8")
    A("    s_lshl_b32 s46, s46, 10")
    A("    s_or_b32 s45, s45, s46")
    A("    s_cmp_eq_u32 s36, 0")
    A("    s_waitcnt lgkmcnt(0)")
    A(f"    s_load_dword s41, s[14:15], {EPO}")
    A("    s_mov_b64 s[16:17], s[4:5]")
    A("    s_mov_b64 s[20:21], s[10:11]")
    A("    s_mov_b64 s[24:25], s[14:15]")
    A("    s_cbranch_scc1 L_t0")
    A(f"    s_add_u32 s12, s4, 0x{pa:x}")
    A("    s_addc_u32 s13, s5, 0")
    A("    s_and_b32 s12, s12, 0xffffc000")
    A("    s_lshr_b32 s46, s12, 8")
    A("    s_and_b32 s46, s46, 0x2000")
    A("    s_xor_b32 s45, s45, s46")
    A("    s_add_u32 s12, s12, s45")
    A("    s_addc_u32 s13, s13, 0")
    A("    s_cmp_lg_u32 s36, 15")
    A("    s_cbranch_scc1 L_s1")
    A("    s_load_dword s47, s[12:13], 0")
    if g8:
        A("    s_lshl_b32 s44, s2, 9")
        A(f"    s_add_u32 s44, s44, {DYN}")
        for r in range(8, 12):
            A(f"    v_mov_b32 v{r}, -1")
        A("    s_mov_b32 exec_hi, 0")
        A(f"    buffer_store_dwordx4 v[8:11], v{VL}, s[24:27], s44 offen sc1")
        A("    s_mov_b32 exec_hi, -1")
    A(f"    s_cmp_ge_u32 s2, {nq}")
    A("    s_cbranch_scc1 L_s1")
    A("    s_mul_i32 s44, s2, 4352")
    A(f"    s_add_u32 s44, s44, {CTR}")
    A("    s_mov_b32 s45, 0")
    A("    s_atomic_swap s45, s[14:15], s44 glc")
    A("L_s1:")
    def touch():
        A("    s_cmp_lg_u32 s36, 13")
        A("    s_cbranch_scc1 L_notx")
        A("    v_lshlrev_b32 v4, 21, v3")
        A(f"    s_mov_b32 s46, {(6 << 21) + 0x1f80}")
        A(f"    s_mov_b64 exec, {hex((1 << tx) - 1)}")
        A("    s_mov_b32 exec_hi, 0")
        A("    buffer_load_dword v8, v4, s[16:19], s46 offen nt")
        if to:
            A(f"    s_mov_b32 exec_lo, {hex((1 << to) - 1)}")
            A("    buffer_load_dword v9, v4, s[20:23], 0 offen offset:0xf80 nt")
        A("    s_mov_b64 exec, -1")
        A("L_notx:")
    if tx and txe:
        touch()
    A("    s_barrier")
    A("    s_cmp_eq_u32 s36, 1")
    A("    s_cbranch_scc1 L_t0")
    A("    s_barrier")
    A("    s_cmp_eq_u32 s36, 2")
    A("    s_cbranch_scc1 L_t0")
    for k in range(3, pt + 1):
        A("    s_barrier")
        A(f"    s_cmp_eq_u32 s36, {k}")
        A("    s_cbranch_scc1 L_t0")
    A("    s_cmp_eq_u32 s36, 15")
    A("    s_cbranch_scc1 L_w15")
    A(f"    s_cmp_ge_u32 s36, {g0}")
    A(f"    s_cselect_b32 s44, {pt + 1 + td - fuse}, {pt}")
    A("    s_sub_u32 s44, s36, s44")
    A("    s_waitcnt vmcnt(0) lgkmcnt(0)")
    if tx and not txe:
        touch()
    A("L_stag:")
    A("    s_barrier")
    A("    s_sub_u32 s44, s44, 1")
    A("    s_cmp_lg_u32 s44, 0")
    A("    s_cbranch_scc1 L_stag")
    A(f"    s_cmp_ge_u32 s36, {g0}")
    A("    s_cbranch_scc1 L_role0")
    A("L_t0:")

    def poll():
        for k in range(4 if not abl & 1 else (2 if abl & 8 else 0)):
            A(f"    buffer_load_dwordx4 v[{4+4*k}:{7+4*k}], v{VL}, s[24:27], s35 offen offset:{1024*k} sc1")

    def norm_valu(lo, hi):
        for i in range(lo, hi):
            for j in range(4):
                r = D + 4 * i + j
                A(f"    v_lshlrev_b32 v{8+2*j}, 16, v{r}")
                A(f"    v_and_b32 v{9+2*j}, s38, v{r}")
            for j in range(4):
                A(f"    v_pk_fma_f32 v[{8+2*j}:{9+2*j}], v[{8+2*j}:{9+2*j}], v[4:5], v[6:7]")
            for j in range(4):
                A(f"    v_cvt_pk_bf16_f32 v{D+4*i+j}, v{8+2*j}, v{9+2*j}")

    def norm_mfma(lo, hi):
        assert lo % 2 == 0 and hi % 2 == 0
        prev = None
        for b in range(lo // 2, hi // 2 + 1):
            ms, cs = [], []
            if b < hi // 2:
                tt = T + 16 * (b & 1)
                for p in range(4):
                    x = D + 8 * b + 2 * p
                    ms.append(f"    v_mfma_f32_4x4x4_16b_bf16 v[{tt+4*p}:{tt+4*p+3}], v[4:5], v[{x}:{x+1}], v[8:11]")
                for p in range(4):
                    x = D + 8 * b + 2 * p
                    ms.append(f"    v_mfma_f32_4x4x4_16b_bf16 v[{tt+4*p}:{tt+4*p+3}], v[6:7], v[{x}:{x+1}], v[{tt+4*p}:{tt+4*p+3}]")
            if prev is not None:
                tt = T + 16 * (prev & 1)
                for k in range(8):
                    cs.append(f"    v_cvt_pk_bf16_f32 v{D+8*prev+k}, v{tt+2*k}, v{tt+2*k+1}")
            if prev == lo // 2:
                A("    s_nop 1")
            for k in range(8):
                if ms: A(ms[k])
                if cs: A(cs[k])
            prev = b if b < hi // 2 else None

    what = {0: "load the slice", wt: "slice mean and variance, publish", wt + 1: "gamma, beta", pl: "read the group's entries",
            ck: "group statistics, normalise", st: "store the slice"}
    for t in range(st + 1):
        A(f"    ; ---- tick {t}" + (f": {what[t]}" if t in what else ""))
        if t == 0:
            stamp(0)
            for i in range(16):
                v = D + 4 * i
                A(f"    buffer_load_dwordx4 v[{v}:{v+3}], v{VL}, s[16:19], s{28 + i // 4} offen offset:{(i % 4) * 1024} {ldf}".rstrip())
            stamp(1)
            if tprio != lprio:
                A(f"    s_setprio {tprio}")
        if t == wt - 1 and hw >= 0:
            if hwg:
                A(f"    s_cmp_ge_u32 s33, {hwg}")
                A("    s_cbranch_scc1 L_nohw")
            A(f"    s_waitcnt vmcnt({hw})")
            A("L_nohw:")
        if t == wt:
            for r in range(4, 12):
                A(f"    v_mov_b32 v{r}, 0")
            if mfs:
                for r in range(12, 16):
                    A(f"    v_mov_b32 v{r}, s37")
                A("    s_nop 0")
            for i in range(16):
                A(f"    s_waitcnt vmcnt({15 - i})")
                if i == 15:
                    stamp(2)
                if mfs:
                    A(f"    v_mfma_f32_16x16x32_bf16 v[4:7], v[{D+4*i}:{D+4*i+3}], v[12:15], v[4:7]")
                else:
                    for j in range(4):
                        A(f"    v_dot2c_f32_bf16 v{4+j}, s37, v{D+4*i+j}")
                for j in range(4):
                    A(f"    v_dot2c_f32_bf16 v{8+j}, v{D+4*i+j}, v{D+4*i+j}")
            A("    s_lshl_b32 s35, s33, 12")
            A("    s_lshl_b32 s44, s34, 4")
            A("    s_waitcnt lgkmcnt(0)")
            A(f"    s_add_u32 s58, s41, 0x{TAGK:x}          ; tag")
            A("    v_add_f32 v4, v4, v5")
            A("    v_add_f32 v6, v6, v7")
            A("    v_cvt_f64_f32 v[12:13], v8")
            A("    v_add_f32 v4, v4, v6")
            A("    v_cvt_f64_f32 v[6:7], v9")
            A("    v_cvt_f64_f32 v[8:9], v10")
            A("    v_cvt_f64_f32 v[10:11], v11")
            A("    v_add_f64 v[6:7], v[6:7], v[12:13]")
            A("    v_add_f64 v[8:9], v[8:9], v[10:11]")
            A("    v_add_f64 v[6:7], v[6:7], v[8:9]")
            for n, ctl in enumerate(DPP):
                A("    s_nop 1")
                A(f"    v_mov_b32_dpp v8, v6 {ctl}")
                A(f"    v_mov_b32_dpp v9, v7 {ctl}")
                if not mfs or n >= 4:
                    A(f"    v_add_f32_dpp v4, v4, v4 {ctl}")
                A("    v_add_f64 v[6:7], v[6:7], v[8:9]")
            A(f"    v_mul_f32 v4, 0x{f32(1.0/NE):08x}, v4")
            A("    v_cvt_f64_f32 v[10:11], v4")
            A("    v_ldexp_f64 v[6:7], v[6:7], -13")
            A("    v_fma_f64 v[6:7], -v[10:11], v[10:11], v[6:7]")
            A("    v_cvt_f32_f64 v6, v[6:7]")
            if g8:
                A("    s_cmp_eq_u32 s43, 0")
                A("    v_readlane_b32 s60, v4, 63")
                A("    v_readlane_b32 s61, v6, 63")
                A("    s_cbranch_scc1 L_pub16")
                A("    s_lshr_b32 s35, s35, 1")
                A(f"    s_add_u32 s35, s35, {DYN}")
                A("    s_lshr_b32 s44, s44, 1")
                A("    s_add_u32 s44, s44, s35")
                A("    s_bitset0_b32 s61, 31")
                A("    s_atomic_swap_x2 s[60:61], s[14:15], s44")
                A("L_pub1:")
            elif spub:
                A("    s_add_u32 s44, s44, s35")
                A("    v_readlane_b32 s60, v4, 63")
                A("    v_readlane_b32 s62, v6, 63")
                A("    s_mov_b32 s61, s58")
                A("    s_mov_b32 s63, s58")
                A("    s_add_u32 s45, s44, 8")
                A("    s_nop 1")
                if abl & 8:
                    A("    s_lshl_b32 s44, s34, 3")
                    A("    s_add_u32 s44, s44, s35")
                if not abl & 2:
                    A("    s_atomic_swap_x2 s[60:61], s[14:15], s44")
                if not abl & 6:
                    A("    s_atomic_swap_x2 s[62:63], s[14:15], s45")
            else:
                A("    v_mov_b32 v5, s58")
                A("    v_mov_b32 v7, s58")
                A("    v_mov_b32 v8, s44")
                A("    s_mov_b32 exec_lo, 0")
                A("    s_mov_b32 exec_hi, 0x80000000")
                A("    buffer_store_dwordx4 v[4:7], v8, s[24:27], s35 offen sc1")
                A("    s_mov_b64 exec, -1")
            stamp(3)
        if t == wt + 1:
            A("    s_and_b32 s44, s33, 31")
            A("    s_lshl_b32 s44, s44, 5")
            A("    s_add_u32 s44, s44, s42                 ; channel")
            A("    s_lshl_b32 s44, s44, 1")
            A("    s_and_b32 s44, s44, 0x7fc")
            A("    s_load_dword s52, s[6:7], s44")
            A("    s_load_dword s53, s[8:9], s44")
            if tp:
                if tpm:
                    A(f"    s_and_b32 s44, s34, {tpm}")
                    A("    s_cbranch_scc1 L_notp")
                A("    s_and_b32 s44, s28, 0xffe00000")
                A("    s_add_u32 s48, s10, s44")
                A("    s_addc_u32 s49, s11, 0")
                A("    s_load_dword s59, s[48:49], 0x2000")
                A(f"    s_add_u32 s44, s44, {(tp + wt + 1) << 22}")
                A("    s_min_u32 s44, s44, 0xfe00000")
                A("    s_add_u32 s50, s4, s44")
                A("    s_addc_u32 s51, s5, 0")
                A("    s_load_dword s55, s[50:51], 0x2000")
                A("L_notp:")
            A(f"    s_mov_b32 s57, {spare}")
            if early:
                A("    ; once the draws have levelled out the entries are there one tick earlier")
                A(f"    s_and_b32 s44, s56, {mem - 1}")
                if ge:
                    A("    s_add_u32 s44, s44, 1")
                    A(f"    s_cmp_ge_u32 s33, {ge}")
                    A("    s_cselect_b32 s44, s44, 0")
                A(f"    s_cmp_ge_u32 s44, {eth}")
                A("    s_addc_u32 s57, s57, 0")
                A(f"    s_cmp_ge_u32 s44, {eth}")
                A("    s_cbranch_scc1 L_early")
        if t == wt + 2 and early:
            A("L_early:")
            if early2:
                if ge2:
                    A(f"    s_cmp_ge_u32 s33, {ge2}")
                    A("    s_cselect_b32 s44, s44, 0")
                A(f"    s_cmp_ge_u32 s44, {eth2}")
                A("    s_addc_u32 s57, s57, 0")
                A(f"    s_cmp_ge_u32 s44, {eth2}")
                A("    s_cbranch_scc1 L_early2")
        if t == wt + 3 and early2:
            A("L_early2:")
        if t == pl - 1 and prio:
            A(f"    s_setprio {prio}")
        if t == pl and g8:
            for k in range(2):
                A(f"    buffer_load_dwordx4 v[{4+4*k}:{7+4*k}], v{VL}, s[24:27], s35 offen offset:{1024*k} sc1")
            A("    s_cmp_lg_u32 s43, 0")
            A("    s_cbranch_scc1 L_p2")
            for k in range(2, 4):
                A(f"    buffer_load_dwordx4 v[{4+4*k}:{7+4*k}], v{VL}, s[24:27], s35 offen offset:{1024*k} sc1")
            A("L_p2:")
            A(f"    s_mov_b32 s46, {SPIN}")
        elif t == pl:
            poll()
            A(f"    s_mov_b32 s46, {SPIN}")
        if t == st and prio:
            A(f"    s_setprio {sprio}")
        if t == ck:
            A("L_poll:")
            A("    s_waitcnt vmcnt(0) lgkmcnt(0)")
            def check16():
                for k in range(4):
                    A(f"    v_xor_b32 v21, s58, v{5+4*k}")
                    A(f"    v_xor_b32 v2, s58, v{7+4*k}")
                    A("    v_or_b32 v21, v21, v2")
                    A(f"    v_cmp_ne_u32 s[{PM+2*k}:{PM+1+2*k}], 0, v21")
                A(f"    s_or_b64 s[44:45], s[{PM}:{PM+1}], s[{PM+2}:{PM+3}]")
                A(f"    s_or_b64 vcc, s[{PM+4}:{PM+5}], s[{PM+6}:{PM+7}]")
                A("    s_or_b64 vcc, vcc, s[44:45]")
                if not abl & 1:
                    A("    s_cbranch_scc1 L_again")
            if g8:
                A("    s_cmp_eq_u32 s43, 0")
                A("    s_cbranch_scc1 L_chk16")
                A("    v_or_b32 v21, v5, v7")
                A("    v_or_b32 v2, v9, v11")
                A(f"    v_cmp_gt_i32 s[{PM}:{PM+1}], 0, v21")
                A(f"    v_cmp_gt_i32 s[{PM+2}:{PM+3}], 0, v2")
                A(f"    s_or_b64 vcc, s[{PM}:{PM+1}], s[{PM+2}:{PM+3}]")
                A("    s_cbranch_scc1 L_again")
                A("L_chk1:")
            else:
                check16()
            stamp(4)
            if stamps:
                A(f"    s_mov_b32 s{SB+14}, s46")
            A("    v_readfirstlane_b32 s44, v4")
            A("    s_bitcmp1_b32 s42, 0")
            A("    s_cselect_b32 s45, 0, 16")
            if g8:
                for r in (4, 6, 8, 10):
                    A(f"    v_subrev_f32 v{r}, s44, v{r}")
                for r in (4, 6, 8, 10):
                    A(f"    v_fmac_f32 v{r+1}, v{r}, v{r}")
                A("    v_add_f32 v4, v4, v6")
                A("    v_add_f32 v8, v8, v10")
                A("    v_add_f32 v5, v5, v7")
                A("    v_add_f32 v9, v9, v11")
                A("    v_add_f32 v4, v4, v8")
                A("    v_add_f32 v5, v5, v9")
            else:
                for r in (4, 8, 12, 16):
                    A(f"    v_subrev_f32 v{r}, s44, v{r}")
                for r in (4, 8, 12, 16):
                    A(f"    v_fmac_f32 v{r+2}, v{r}, v{r}")
                A("    v_add_f32 v4, v4, v8")
                A("    v_add_f32 v12, v12, v16")
                A("    v_add_f32 v5, v6, v10")
                A("    v_add_f32 v14, v14, v18")
                A("    v_add_f32 v4, v4, v12")
                A("    v_add_f32 v5, v5, v14")
            for ctl in DPP:
                A("    s_nop 0")
                A(f"    v_add_f32_dpp v4, v4, v4 {ctl}")
                A(f"    v_add_f32_dpp v5, v5, v5 {ctl}")
            A("    s_lshl_b32 s52, s52, s45")
            A("    s_lshl_b32 s53, s53, s45")
            A("    v_readlane_b32 s46, v4, 63")
            A("    v_readlane_b32 s47, v5, 63")
            A("    s_and_b32 s52, s52, s38")
            A("    s_and_b32 s53, s53, s38")
            A(f"    v_mov_b32 v6, 0x{f32(1.0/256):08x}")
            A("    v_mul_f32 v4, s46, v6")
            A("    v_mul_f32 v5, s47, v6")
            A("    v_fma_f32 v5, -v4, v4, v5")
            A("    v_add_f32 v6, s44, v4                   ; mean")
            A("    v_cvt_pk_bf16_f32 v12, v6, v6")
            A("    v_lshlrev_b32 v12, 16, v12")
            A("    v_sub_f32 v6, s44, v12")
            A("    v_add_f32 v6, v6, v4")
            A("    v_fmac_f32 v5, v6, v6")
            A("    v_cvt_pk_bf16_f32 v5, v5, v5")
            A("    v_lshlrev_b32 v5, 16, v5")
            A(f"    v_add_f32 v5, 0x{f32(1e-5):08x}, v5")
            A("    v_cvt_pk_bf16_f32 v5, v5, v5")
            A("    v_lshlrev_b32 v5, 16, v5")
            A("    v_sqrt_f32 v5, v5")
            A("    s_nop 0")
            A("    v_cvt_pk_bf16_f32 v5, v5, v5")
            A("    v_lshlrev_b32 v5, 16, v5")
            A("    v_rcp_f32 v5, v5")
            A("    s_nop 0")
            A("    v_mul_f32 v4, s52, v5                   ; A = g / std")
            if mf:
                A("    v_cvt_pk_bf16_f32 v5, v4, v4")
                A("    v_and_b32 v13, s38, v5")
                A("    v_sub_f32 v4, v4, v13")
                A("    v_cvt_pk_bf16_f32 v7, v4, v4")
                A("    v_and_b32 v14, s38, v7")
                A("    v_add_f32 v13, v13, v14")
                A("    v_fma_f32 v8, -v12, v13, s53            ; B = b - mean*A")
                A(f"    v_and_b32 v4, v5, v{M0}")
                A(f"    v_and_b32 v5, v5, v{M1}")
                A(f"    v_and_b32 v6, v7, v{M0}")
                A(f"    v_and_b32 v7, v7, v{M1}")
                A("    v_mov_b32 v9, v8")
                A("    v_mov_b32 v10, v8")
                A("    v_mov_b32 v11, v8")
                A("    s_nop 1")
            else:
                A("    v_fma_f32 v6, -v12, v4, s53             ; B = b - mean*A")
                A("    v_mov_b32 v5, v4")
                A("    v_mov_b32 v7, v6")
        if ck <= t < ck + nn:
            cuts = [0, 16] if nn == 1 else [0, n1, 16]
            if mf:
                A("    ; out = high*x + low*x + B, four elements per lane and instruction (diagonal 4x4 matrices)")
            (norm_mfma if mf else norm_valu)(cuts[t - ck], cuts[t - ck + 1])
        if t == st:
            stamp(5)
            for i in range(16):
                v = D + 4 * i
                A(f"    buffer_store_dwordx4 v[{v}:{v+3}], v{VL}, s[20:23], s{28 + i // 4} offen offset:{(i % 4) * 1024} {stf}".rstrip())
            A("    s_lshl_b32 s44, s33, 8")
            A("    s_or_b32 s44, s44, s34")
            if bump == 0:
                A(f"    s_cmp_eq_u32 s44, {(pt + 1) << 8}")
                A("    s_cbranch_scc1 L_epo")
            A("L_epo1:")
            if stamps:
                stamp(6)
                A("    s_waitcnt lgkmcnt(0)")
                for k in range(7):
                    A(f"    v_mov_b32 v{4+k}, s{SB+2*k}")
                A(f"    s_sub_u32 s46, {SPIN}, s{SB+14}")
                A("    s_lshl_b32 s45, s2, 8")
                A("    s_or_b32 s46, s46, s45")
                A("    s_lshl_b32 s45, s39, 16")
                A("    s_or_b32 s46, s46, s45")
                A("    v_mov_b32 v11, s46")
                A("    s_lshl_b32 s44, s44, 5")
                A("    s_add_u32 s44, s44, 0x20020000")
                A("    v_mov_b32 v12, s44")
                A("    s_mov_b64 exec, 1")
                A("    buffer_store_dwordx4 v[4:7], v12, s[24:27], 0 offen")
                A("    buffer_store_dwordx4 v[8:11], v12, s[24:27], 0 offen offset:16")
                A("    s_mov_b64 exec, -1")
        A("    s_barrier")
    A("L_idle:")
    if sprio != lprio:
        A(f"    s_setprio {lprio}")
    A("    s_min_u32 s45, s57, s39")
    A("    s_sub_u32 s39, s39, s45")
    A("    s_sub_u32 s57, s57, s45")
    A("L_idle1:")
    A("    s_cmp_eq_u32 s57, 0")
    A("    s_cbranch_scc1 L_next")
    A("    s_barrier")
    A("    s_sub_u32 s57, s57, 1")
    A("    s_branch L_idle1")
    A("L_next:")
    A("    s_cmp_eq_u32 s43, 0")
    A("    s_cbranch_scc1 L_role0")
    if gq:
        assert route and 2048 // nk - nk >= (64 - gq) * mem
        A("    s_mov_b32 s56, -1")
        A(f"    s_cmp_ge_u32 s33, {gq}")
        A("    s_cbranch_scc1 L_drawn")
    A("L_draw:")
    A("    s_mov_b32 s56, 1")
    A("    s_atomic_add s56, s[14:15], s54 glc")
    A("L_drawn:")
    for k in range(td):
        A("    s_barrier")
    A("    s_waitcnt lgkmcnt(0)")
    A(f"    s_cmp_ge_u32 s56, {(64 - g0) * mem}")
    A("    s_cbranch_scc1 L_fin")
    A(f"    s_lshr_b32 s33, s56, {lm}")
    A(f"    s_add_u32 s33, s33, {g0}")
    A(f"    s_and_b32 s44, s56, {mem - 1}")
    A(f"    s_lshl_b32 s44, s44, {7 - lm}")
    A("    s_or_b32 s44, s44, s3")
    if route:
        A("    ; the ticket picks the counter of this wave's next draw: that keeps the counters level")
        A("    s_mul_i32 s45, s3, 4352")
        A("    s_sub_u32 s54, s54, s45")
        A("    s_add_u32 s3, s3, s56")
        A(f"    s_and_b32 s3, s3, {nk - 1}")
        A("    s_mul_i32 s45, s3, 4352")
        A("    s_add_u32 s54, s54, s45")
    A("    s_lshr_b32 s42, s44, 2")
    A("    s_lshl_b32 s34, s44, 1")
    A("    s_and_b32 s45, s43, 1")
    A("    s_or_b32 s34, s34, s45")
    A("    s_lshl_b32 s44, s44, 15")
    A("    s_lshl_b32 s45, s33, 22")
    A("    s_or_b32 s28, s44, s45")
    A("    s_or_b32 s29, s28, 0x1000")
    A("    s_lshl_b32 s46, s43, 13")
    for b in range(2):
        A(f"    s_add_u32 s44, s{28+b}, s4")
        A("    s_lshr_b32 s45, s44, 8")
        A("    s_xor_b32 s44, s44, s45")
        A("    s_xor_b32 s44, s44, s46")
        A("    s_and_b32 s44, s44, 0x2000")
        A(f"    s_or_b32 s{28+b}, s{28+b}, s44")
        A(f"    s_or_b32 s{30+b}, s{28+b}, 0x4000")
    A("L_prebar:")
    if not fuse:
        A("    s_barrier")
    for k in range(ldn):
        A("    s_nop 15")
    A("    s_branch L_t0")

    A("L_again:                                    ; read the slots still missing once more, one tick later")
    for k in range(4):
        A(f"    s_mov_b64 exec, s[{PM+2*k}:{PM+1+2*k}]")
        A(f"    s_cbranch_execz L_skip{k}")
        A(f"    buffer_load_dwordx4 v[{4+4*k}:{7+4*k}], v{VL}, s[24:27], s35 offen offset:{1024*k} sc1")
        A(f"L_skip{k}:")
    A("    s_mov_b64 exec, -1")
    A("    s_barrier")
    A("    s_add_u32 s39, s39, 1")
    A("    s_sub_u32 s46, s46, 1")
    A("    s_cmp_lg_u32 s46, 0")
    A("    s_cbranch_scc1 L_poll")
    A("    s_branch L_end")

    if g8:
        A("L_pub16:                                    ; first round: nothing is cleared yet, both halves carry the tag")
        A("    s_add_u32 s44, s44, s35")
        A("    s_mov_b32 s62, s61")
        A("    s_mov_b32 s61, s58")
        A("    s_mov_b32 s63, s58")
        A("    s_add_u32 s45, s44, 8")
        A("    s_atomic_swap_x2 s[60:61], s[14:15], s44")
        A("    s_atomic_swap_x2 s[62:63], s[14:15], s45")
        A("    s_branch L_pub1")
        A("L_chk16:")
        check16()
        for dst, src in ((5, 6), (6, 8), (7, 10), (8, 12), (9, 14), (10, 16), (11, 18)):
            A(f"    v_mov_b32 v{dst}, v{src}")
        A("    s_branch L_chk1")
    A("L_epo:                                      ; this row complete: every wave of every workgroup has read the epoch")
    A("    v_mov_b32 v4, s58")
    A(f"    v_mov_b32 v5, {EPO}")
    A("    s_mov_b64 exec, 1")
    A("    buffer_store_dword v4, v5, s[24:27], 0 offen sc1")
    A("    s_mov_b64 exec, -1")
    A("    s_branch L_epo1")

    A("L_role0:                                    ; first draw: wait for wave 15's result")
    A(f"    s_mov_b32 s46, {SPIN}")
    A("L_role:")
    A("    v_mov_b32 v4, 0")
    A("    ds_read_b32 v4, v4")
    A("    s_waitcnt lgkmcnt(0)")
    A("    v_readfirstlane_b32 s43, v4")
    A("    s_cmp_lg_u32 s43, 0")
    A("    s_cbranch_scc1 L_role1")
    A("    s_barrier")
    A("    s_add_u32 s39, s39, 1")
    A("    s_sub_u32 s46, s46, 1")
    A("    s_cmp_lg_u32 s46, 0")
    A("    s_cbranch_scc1 L_role")
    A("    s_branch L_end")
    A("L_role1:")
    if g8:
        A(f"    s_mov_b64 s[{PM+4}:{PM+5}], 0")
        A(f"    s_mov_b64 s[{PM+6}:{PM+7}], 0")
    A("    s_lshr_b32 s3, s2, 3")
    A("    s_add_u32 s3, s3, s36")
    A(f"    s_and_b32 s3, s3, {nk - 1}")
    A("    s_and_b32 s44, s43, 1")
    A(f"    s_mul_i32 s44, s44, {nk}")
    A("    s_add_u32 s44, s44, s3")
    A("    s_mul_i32 s44, s44, 4352")
    A(f"    s_add_u32 s54, s44, {CTR}")
    A("    s_branch L_draw")

    A("L_fin:")
    if not fuse:
        A("    s_barrier")
    if gd:
        A("    ; Once only stores are left, a lone read waits about 2 us for its turn on the die link.  A thin stream of")
        A(f"    s_cmp_ge_u32 s33, {gd}")
        A("    s_cbranch_scc1 L_fin2")
        if gdl:
            A(f"    s_cmp_lt_u32 s33, {gdl}")
            A("    s_cbranch_scc1 L_fin2")
        if sd:
            A("    s_add_u32 s12, s4, s28")
            A("    s_addc_u32 s13, s5, 0")
            for k in range(sd):
                if sdw == 1:
                    A(f"    s_load_dword s47, s[12:13], {k * 4096 // sd // 64 * 64} glc")
                else:
                    A(f"    s_load_dwordx16 s[48:63], s[12:13], {k * 4096 // sd // 64 * 64} glc")
        else:
            A(f"    v_lshlrev_b32 v4, 3, v{VL}")
            A("    s_mov_b32 exec_hi, 0")
            if dm != 0xffffffff:
                A(f"    s_mov_b32 exec_lo, 0x{dm:x}")
            if gd1:
                A(f"    s_cmp_ge_u32 s33, {gd1}")
                A(f"    s_cselect_b32 exec_lo, 0x{dm1:x}, exec_lo")
            A(f"    buffer_load_dword v{D}, v4, s[16:19], s28 offen {dlf}".rstrip())
        A("L_fin2:")
    for k in range(xb):
        A("    s_barrier")
    if bump > 0:
        assert pt + 1 <= bump < g0
        A("    s_lshl_b32 s44, s2, 4")
        A("    s_or_b32 s44, s44, s36")
        A(f"    s_cmp_lg_u32 s44, {bump}")
        A("    s_cbranch_scc1 L_end")
        A("    s_mov_b64 exec, 1")
        A("    v_mov_b32 v4, s58")
        A(f"    v_mov_b32 v5, {EPO}")
        A("    buffer_store_dword v4, v5, s[24:27], 0 offen sc1")
    A("L_end:")
    A("    s_endpgm")

    A(".p2align 6")
    A("L_w15:                                      ; wave 15 before its first slice: time, announce, collect")
    A("    s_waitcnt lgkmcnt(0)")
    A("    s_memtime s[48:49]")
    A("    s_waitcnt lgkmcnt(0)")
    A(f"    s_load_dword s47, s[12:13], {0x10000 if pglc == 2 else 0} glc")
    A("    s_waitcnt lgkmcnt(0)")
    if shots == 2:
        A("    s_memtime s[52:53]")
        A("    s_waitcnt lgkmcnt(0)")
        A(f"    s_load_dword s47, s[12:13], {0x20000 if pglc == 2 else 0} glc")
        A("    s_waitcnt lgkmcnt(0)")
    A("    s_memtime s[50:51]")
    A("    s_getreg_b32 s40, hwreg(HW_REG_XCC_ID)")
    A("    s_bfe_u32 s40, s40, 0x10002")
    A("    v_mov_b32 v4, 0")
    A("    ds_write_b32 v4, v4")
    A("    s_waitcnt lgkmcnt(0)")
    if shots == 2:
        A("    s_sub_u32 s46, s52, s48")
        A("    s_sub_u32 s45, s50, s52")
    else:
        A("    s_sub_u32 s46, s50, s48")
    if dbg == 2:
        A("    s_sub_u32 s45, s48, s70")
    if dbg in (1, 2):
        A("    v_mov_b32 v5, s46")
        A("    s_getreg_b32 s47, hwreg(HW_REG_XCC_ID)")
        A("    v_mov_b32 v7, s47")
        A("    v_mov_b32 v4, s4")
        A("    v_mov_b32 v6, s45")
        A("    s_lshl_b32 s47, s2, 4")
        A("    v_mov_b32 v8, s47")
        A("    s_mov_b32 s26, 0x40000000")
        A("    s_mov_b32 s47, 0x20000000")
        A("    s_mov_b64 exec, 1")
        A("    buffer_store_dwordx4 v[4:7], v8, s[24:27], s47 offen")
        A("    s_mov_b64 exec, -1")
    if shots == 2:
        A("    s_min_u32 s46, s46, s45")
    A(f"    s_sub_i32 s46, s46, {t0}")
    A(f"    s_ashr_i32 s46, s46, {sh}")
    A("    s_min_i32 s46, s46, 63")
    A("    s_max_i32 s46, s46, 0")
    A("    s_bfe_u32 s47, s2, 0x10003")
    A("    s_cmp_eq_u32 s47, s40")
    A("    s_cselect_b32 s47, 0, 63")
    A("    s_xor_b32 s46, s46, s47")
    A("    s_lshl_b32 s47, s40, 6")
    A("    s_or_b32 s46, s46, s47")
    A(f"    s_add_u32 s58, s41, 0x{TAGK:x}          ; tag")
    A("    s_and_b32 s47, s58, 0xffffff00")
    A("    s_or_b32 s59, s46, s47")
    A("    s_lshl_b32 s46, s2, 3")
    A(f"    s_add_u32 s46, s46, {ANN}")
    A("    s_waitcnt vmcnt(0)")
    if spub:
        A("    s_mov_b64 s[62:63], s[58:59]")
        A("    s_atomic_swap_x2 s[62:63], s[14:15], s46")
    else:
        A("    v_mov_b32 v4, s58")
        A("    v_mov_b32 v5, s59")
        A("    v_mov_b32 v6, s46")
        A("    s_mov_b64 exec, 1")
        A("    buffer_store_dwordx2 v[4:5], v6, s[24:27], 0 offen sc1")
        A("    s_mov_b64 exec, -1")
    A(f"    s_mov_b32 s45, {ANN}")
    A(f"    s_mov_b32 s46, {SPIN}")
    if aprio:
        A(f"    s_setprio {aprio}")
    for t in range(pt, fl - fd):
        A("    s_barrier")
    A("L_ann:")
    A(f"    buffer_load_dwordx4 v[4:7], v{VL}, s[24:27], s45 offen sc1")
    A(f"    buffer_load_dwordx4 v[8:11], v{VL}, s[24:27], s45 offen offset:1024 sc1")
    for t in range(fd):
        A("    s_barrier")
    A("    s_waitcnt vmcnt(0)")
    for r in (4, 6, 8, 10):
        A(f"    v_xor_b32 v{r}, s58, v{r}")
    for k, r in enumerate((5, 7, 9, 11)):
        A(f"    v_xor_b32 v{12+k}, s58, v{r}")
    A("    v_or3_b32 v12, v12, v13, v14")
    A("    v_or_b32 v12, v12, v15")
    A("    v_and_b32 v12, 0xffffff00, v12")
    A("    v_or3_b32 v12, v12, v4, v6")
    A("    v_or3_b32 v12, v12, v8, v10")
    A("    v_cmp_ne_u32 vcc, 0, v12")
    A("    s_cbranch_vccz L_annok")
    A(f"    s_add_u32 s39, s39, {fd}")
    A("    s_sub_u32 s46, s46, 1")
    A("    s_cmp_lg_u32 s46, 0")
    A("    s_cbranch_scc1 L_ann")
    A("    s_branch L_end")
    A("L_annok:                                    ; everybody has cleared its share and announced")
    for r in (5, 7, 9, 11):
        A(f"    v_and_b32 v{r-1}, 64, v{r}")
        A(f"    v_and_b32 v{r}, 63, v{r}")
    A("    v_add3_u32 v4, v4, v6, v8")
    A("    v_add3_u32 v5, v5, v7, v9")
    A("    v_add_u32 v4, v4, v10")
    A("    v_add_u32 v5, v5, v11")
    A("    v_lshl_add_u32 v5, v4, 10, v5")
    for ctl in DPP:
        A("    s_nop 1")
        A(f"    v_add_u32_dpp v5, v5, v5 {ctl}")
    A("    s_bfe_u32 s46, s2, 0x10002")
    A("    v_readlane_b32 s44, v5, 63")
    A("    s_lshr_b32 s45, s44, 16")
    A("    s_and_b32 s44, s44, 0xffff")
    A("    s_cmp_eq_u32 s45, 128")
    A("    s_cselect_b32 s46, s40, s46")
    if dbg == 3:
        A("    v_mov_b32 v6, s44")
        A("    v_mov_b32 v7, 0x6fff0")
        A("    buffer_store_dword v6, v7, s[24:27], 0 offen")
    A("    s_cmp_gt_u32 s44, 8064")
    A("    s_cselect_b32 s44, 1, 0")
    if force >= 0:
        A("    s_bfe_u32 s44, s4, 0x10015")
        A(f"    s_xor_b32 s44, s44, {force}")
    A("    s_xor_b32 s44, s44, s46")
    A("    s_or_b32 s44, s44, 2")
    A("    v_mov_b32 v4, 0")
    A("    v_mov_b32 v5, s44")
    A("    ds_write_b32 v4, v5")
    A("    s_waitcnt lgkmcnt(0)")
    if aprio:
        A("    s_setprio 0")
    A(f"    s_mov_b32 s57, {14 - td - fl + fuse}")
    A("    s_branch L_idle")
    A("L_last:")
    A("    s_endpgm")
    return finish(o, vgpr, 88 if stamps else 72)


if __name__ == "__main__":
    import inspect
    p = argparse.ArgumentParser()
    for k, v in inspect.signature(gen).parameters.items():
        p.add_argument("--" + k, type=(lambda z: int(z, 0)) if isinstance(v.default, int) else str, default=v.default)
    p.add_argument("-o", default="-")
    a = vars(p.parse_args())
    out = a.pop("o")
    open(out, "w").write(gen(**a))
```

```python
import sys, re
from gen1 import NAME
base = open(sys.argv[1]).read()
shot, thr = int(sys.argv[3]), int(sys.argv[4])
o = []
A = o.append
A(".p2align 8")
A(".globl rep_kernel")
A(".type rep_kernel,@function")
A("rep_kernel:")
A("    s_cmp_ge_u32 s2, 1")
A("    s_cbranch_scc1 R_end")
A("    s_load_dwordx4 s[12:15], s[0:1], 32")
A("    s_waitcnt lgkmcnt(0)")
for r, (lo, hi, sz) in {28: (12, 13, 256), 24: (14, 15, 0x40000000)}.items():
    A(f"    s_mov_b32 s{r}, s{lo}")
    A(f"    s_mov_b32 s{r+1}, s{hi}")
    A(f"    s_mov_b32 s{r+2}, {sz}")
    A(f"    s_mov_b32 s{r+3}, 0x00020000")
A("    v_lshlrev_b32 v1, 4, v0")
A("    s_mov_b32 s50, 0")
A(f"    s_mov_b32 s41, {thr}")
for q in range(4):
    A(f"    s_mov_b32 s40, {0x20000000 + q * 1024 + shot * 4}")
    A("    buffer_load_dword v4, v1, s[24:27], s40 offen")
    A("    s_waitcnt vmcnt(0)")
    A("    v_cmp_lt_u32 vcc, s41, v4")
    A("    s_bcnt1_i32_b64 s51, vcc")
    A("    s_add_u32 s50, s50, s51")
A("    v_lshlrev_b32 v1, 2, v0")
A("    buffer_store_dword v4, v1, s[28:31], 0 offen")
A("    s_mul_i32 s50, s50, 2000")
A("    s_memrealtime s[44:45]")
A("    s_waitcnt lgkmcnt(0)")
A("R_dl:")
A("    s_memrealtime s[46:47]")
A("    s_waitcnt lgkmcnt(0)")
A("    s_sub_u32 s52, s46, s44")
A("    s_cmp_lt_u32 s52, s50")
A("    s_cbranch_scc1 R_dl")
A("R_end:")
A("    s_endpgm")
kd = """.p2align 6
.amdhsa_kernel rep_kernel
  .amdhsa_next_free_vgpr 32
  .amdhsa_next_free_sgpr 64
  .amdhsa_accum_offset 32
  .amdhsa_group_segment_fixed_size 0
  .amdhsa_kernarg_size 48
  .amdhsa_user_sgpr_count 2
  .amdhsa_user_sgpr_kernarg_segment_ptr 1
  .amdhsa_system_sgpr_workgroup_id_x 1
.end_amdhsa_kernel
"""
m = re.search(r"; @launch (grid=\S+ block=\S+ lds=\d+)", base)
s = base.replace(m.group(0), f"; @launch kernel={NAME} {m.group(1)}\n; @launch kernel=rep_kernel grid=(1,1,1) block=(64,1,1) lds=0")
s = s.replace('.section .rodata,"a"', "\n".join(o) + "\n" + '.section .rodata,"a"')
s = s + kd
open(sys.argv[2], "w").write(s)
```

```python
import sys, argparse
from gen1 import HEADER, NAME, f32, finish

DPP = ["row_shr:1 row_mask:0xf bank_mask:0xf bound_ctrl:0", "row_shr:2 row_mask:0xf bank_mask:0xf bound_ctrl:0",
       "row_shr:4 row_mask:0xf bank_mask:0xf bound_ctrl:0", "row_shr:8 row_mask:0xf bank_mask:0xf bound_ctrl:0",
       "row_bcast:15 row_mask:0xa bank_mask:0xf", "row_bcast:31 row_mask:0xc bank_mask:0xf"]
DOC = '''; GroupNorm over 64 groups of 4 MiB, one pass over memory: x is read once, held in registers until the group's
;
;
; that bit; from group G0 on a workgroup reads the address class next to it.  Which workgroup takes which slice is
;
'''
SPIN = 300000
ANN = 0x40000
DYN = 0x10000
EPO = 0x40800
CTR = 0x41000
WSB = 0x70000
TAGK = 0x9e3779b9


def gen(wt=2, pl=6, pd=2, nn=1, n1=6, mf=1, g0=11, fl=7, fd=2, td=1, nq=16, spub=1, xb=3, gd=60, early=0, eth=8, early2=0, eth2=12,
        plf=0, ldf="nt", stf="sc1", vgpr=128, force=-1, stamps=0, sh=5, t0=300, mfs=0, pglc=1, dbg=0, pf=14, shots=1, pt=2, ge=0, ge2=0, dm=0xffffffff, gd1=0, dm1=0x55555555, dlf='nt', abl=0, prio=0, ldn=0, pa=0x8000, tp=0, tpm=0, g8=0, tx=0, to=0, txe=0, fuse=0, lprio=0, sprio=0, tprio=0, route=0, gdl=0, gq=0, sd=0, sdw=1, aprio=0, bump=0, hw=-1, hwg=0, sp2=-1, qx=-1, nb0=0, rotw=0, p1=0, nprio=-1, gelt=0, tpo=1, tpx=1, hwl=0, iw=0, smap=0, xs=0, gl=0, gp=64, gp2=64, stf2='', mg=0):
    ck = pl + pd
    st = ck + nn - mg
    spare = 14 - td - st + fuse
    assert spare >= 0 and pl > wt + 1 + (early > 0) + (early2 > 0) and 6 <= g0 <= 15 and fl - fd >= pt + 1 and g0 >= pt + 3 + td
    NE = 8192
    D = 24
    VL = 20
    M0, M1 = 22, 23
    T = 88
    PM = 64
    SB = 72
    nk = nq // 2
    mem = 256 // nq
    lm = mem.bit_length() - 1
    o = []
    A = o.append

    def stamp(k):
        if stamps and not (stamps == 2 and k == 3):
            A(f"    s_memrealtime s[{SB+2*k}:{SB+1+2*k}]")

    A(HEADER + "; @launch grid=(256,1,1) block=(1024,1,1) lds=64")
    A(DOC.replace("G0", str(g0)).rstrip())
    A('.amdgcn_target "amdgcn-amd-amdhsa--gfx950"')
    A(".text")
    A(f".globl {NAME}")
    A(".p2align 8")
    A(f".type {NAME},@function")
    A(f"{NAME}:")
    if stamps == 2:
        A(f"    s_memrealtime s[{SB+6}:{SB+7}]")
    if dbg == 2:
        A("    s_memtime s[70:71]")
    A("    s_load_dwordx4 s[4:7], s[0:1], 0        ; x, g")
    A("    s_load_dwordx4 s[8:11], s[0:1], 16      ; b, out")
    A("    s_load_dwordx2 s[14:15], s[0:1], 40     ; ws")
    A("    s_cmp_ge_u32 s2, 256")
    A("    s_cbranch_scc1 L_end")
    if rotw:
        A(f"    v_add_u32 v2, {(16 - rotw) * 64}, v0")
        A("    v_bfe_u32 v2, v2, 6, 4")
    else:
        A("    v_lshrrev_b32 v2, 6, v0")
    A("    v_and_b32 v3, 63, v0                    ; lane")
    A("    s_mov_b32 s18, 0x10000000")
    A("    v_readfirstlane_b32 s36, v2             ; wave")
    if pf:
        A("    s_getpc_b64 s[48:49]")
        A("L_pc:")
        A("    v_lshlrev_b32 v4, 7, v3")
        A("    v_min_u32 v4, L_last-L_pc, v4")
        A(f"    s_cmp_lg_u32 s36, {pf}")
        A("    s_cbranch_scc1 L_nopf")
        A("    global_load_dword v5, v4, s[48:49]")
        A("L_nopf:")
    A("    s_mov_b32 s19, 0x00020000")
    A("    s_mov_b32 s22, s18")
    A("    s_mov_b32 s23, 0x00020000")
    A(f"    s_mov_b32 s26, {0x40000000 if stamps else WSB}")
    A("    s_mov_b32 s27, 0x00020000")
    A("    s_mov_b32 s37, 0x3f803f80")
    A("    s_mov_b32 s38, 0xffff0000")
    if xs:
        A(f"    s_cmp_lt_u32 s36, {xs}")
        A("    s_cselect_b32 s39, 1, 0")
    else:
        A("    s_mov_b32 s39, 0")
    A("    s_mov_b32 s43, 0")
    A("    s_mov_b32 s56, 0                        ; ticket")
    A("    s_mov_b32 s33, s36                      ; group")
    A("    s_mov_b32 s34, s2")
    A(f"    v_lshlrev_b32 v{VL}, 4, v3")
    A("    s_lshr_b32 s42, s34, 3")
    if smap == 1 or smap == 2:
        A("    s_lshl_b32 s44, s42, 17")
        A("    s_lshl_b32 s45, s33, 22")
        A("    s_or_b32 s28, s44, s45")
        if smap == 1:
            A("    s_lshl_b32 s44, s33, 1")
            A("    s_and_b32 s44, s44, 2")
        else:
            A("    s_mul_i32 s44, s33, 3")
        A("    s_xor_b32 s44, s44, s34")
        A("    s_and_b32 s44, s44, 7")
        A("    s_lshl_b32 s44, s44, 12")
        A("    s_or_b32 s28, s28, s44")
        A("    s_or_b32 s29, s28, 0x8000")
        A("    s_or_b32 s30, s28, 0x10000")
        A("    s_or_b32 s31, s28, 0x18000")
    elif smap == 3:
        A("    s_lshl_b32 s44, s42, 17")
        A("    s_lshl_b32 s45, s33, 22")
        A("    s_or_b32 s28, s44, s45")
        A("    s_and_b32 s44, s34, 7")
        A("    s_lshl_b32 s44, s44, 12")
        A("    s_or_b32 s28, s28, s44")
        A("    s_or_b32 s29, s28, 0x8000")
        A("    s_xor_b32 s30, s28, 0x12000")
        A("    s_xor_b32 s31, s28, 0x1a000")
    else:
        A("    s_lshl_b32 s44, s42, 2")
        A("    s_and_b32 s45, s34, 3")
        A("    s_or_b32 s44, s44, s45")
        A("    s_lshl_b32 s44, s44, 15")
        A("    s_lshl_b32 s45, s33, 22")
        A("    s_or_b32 s28, s44, s45")
        A("    s_and_b32 s44, s34, 4")
        A("    s_lshl_b32 s44, s44, 11")
        A("    s_or_b32 s28, s28, s44")
        A("    s_or_b32 s29, s28, 0x1000")
        A("    s_xor_b32 s30, s28, 0x6000")
        A("    s_xor_b32 s31, s29, 0x6000")
    if mf:
        A("    v_and_b32 v6, 1, v3")
        A("    v_lshlrev_b32 v6, 4, v6")
        A("    v_mov_b32 v7, 0xffff")
        A("    v_lshlrev_b32 v6, v6, v7")
        A("    v_bfe_i32 v7, v3, 1, 1")
        A(f"    v_and_b32 v{M1}, v7, v6")
        A(f"    v_xor_b32 v{M0}, v{M1}, v6")
    A("    s_and_b32 s46, s2, 63")
    A("    s_lshr_b32 s45, s2, 6")
    A("    s_lshl_b32 s46, s46, 7")
    A("    s_lshl_b32 s45, s45, 14")
    A("    s_or_b32 s45, s45, s46")
    A("    s_and_b32 s46, s2, 8")
    A("    s_lshl_b32 s46, s46, 10")
    A("    s_or_b32 s45, s45, s46")
    A(f"    s_cmp_le_u32 s36, {nb0}")
    A("    s_waitcnt lgkmcnt(0)")
    A(f"    s_load_dword s41, s[14:15], {EPO}")
    A("    s_mov_b64 s[16:17], s[4:5]")
    A("    s_mov_b64 s[20:21], s[10:11]")
    A("    s_mov_b64 s[24:25], s[14:15]")
    A("    s_cbranch_scc1 L_t0")
    A(f"    s_add_u32 s12, s4, 0x{pa:x}")
    A("    s_addc_u32 s13, s5, 0")
    A("    s_and_b32 s12, s12, 0xffffc000")
    A("    s_lshr_b32 s46, s12, 8")
    A("    s_and_b32 s46, s46, 0x2000")
    A("    s_xor_b32 s45, s45, s46")
    A("    s_add_u32 s12, s12, s45")
    A("    s_addc_u32 s13, s13, 0")
    A("    s_cmp_lg_u32 s36, 15")
    A("    s_cbranch_scc1 L_s1")
    A("    s_load_dword s47, s[12:13], 0")
    if g8:
        A("    s_lshl_b32 s44, s2, 9")
        A(f"    s_add_u32 s44, s44, {DYN}")
        for r in range(8, 12):
            A(f"    v_mov_b32 v{r}, -1")
        A("    s_mov_b32 exec_hi, 0")
        A(f"    buffer_store_dwordx4 v[8:11], v{VL}, s[24:27], s44 offen sc1")
        A("    s_mov_b32 exec_hi, -1")
    A(f"    s_cmp_ge_u32 s2, {nq}")
    A("    s_cbranch_scc1 L_s1")
    A("    s_mul_i32 s44, s2, 4352")
    A(f"    s_add_u32 s44, s44, {CTR}")
    A("    s_mov_b32 s45, 0")
    A("    s_atomic_swap s45, s[14:15], s44 glc")
    A("L_s1:")
    def touch():
        A("    s_cmp_lg_u32 s36, 13")
        A("    s_cbranch_scc1 L_notx")
        A("    v_lshlrev_b32 v4, 21, v3")
        A(f"    s_mov_b32 s46, {(6 << 21) + 0x1f80}")
        A(f"    s_mov_b64 exec, {hex((1 << tx) - 1)}")
        A("    s_mov_b32 exec_hi, 0")
        A("    buffer_load_dword v8, v4, s[16:19], s46 offen nt")
        if to:
            A(f"    s_mov_b32 exec_lo, {hex((1 << to) - 1)}")
            A("    buffer_load_dword v9, v4, s[20:23], 0 offen offset:0xf80 nt")
        A("    s_mov_b64 exec, -1")
        A("L_notx:")
    if tx and txe:
        touch()
    if nb0 < 1:
        A("    s_barrier")
        A("    s_cmp_eq_u32 s36, 1")
        A("    s_cbranch_scc1 L_t0")
    if p1:
        A("    s_cmp_eq_u32 s36, 15")
        A("    s_cbranch_scc1 L_w15")
    if nb0 < 2:
        A("    s_barrier")
        A("    s_cmp_eq_u32 s36, 2")
        A("    s_cbranch_scc1 L_t0")
    for k in range(3, pt + 1):
        A("    s_barrier")
        A(f"    s_cmp_eq_u32 s36, {k}")
        A("    s_cbranch_scc1 L_t0")
    if not p1:
        A("    s_cmp_eq_u32 s36, 15")
        A("    s_cbranch_scc1 L_w15")
    A(f"    s_cmp_ge_u32 s36, {g0}")
    A(f"    s_cselect_b32 s44, {pt + 1 + td - fuse}, {pt}")
    A("    s_sub_u32 s44, s36, s44")
    if xs:
        assert xs >= 4
        A("    s_add_u32 s44, s44, s39")
        A("    s_sub_u32 s44, s44, 1")
    A("    s_waitcnt vmcnt(0) lgkmcnt(0)")
    if gl:
        A(f"    s_cmp_lt_u32 s36, {gl}")
        A("    s_cbranch_scc1 L_nogl")
        A("    s_getreg_b32 s46, hwreg(HW_REG_XCC_ID)")
        A("    s_lshl_b32 s46, s46, 11")
        A("    s_and_b32 s28, s28, 0xffffdfff")
        A("    s_lshr_b32 s45, s28, 8")
        A("    s_xor_b32 s46, s46, s45")
        A("    s_and_b32 s46, s46, 0x2000")
        A("    s_or_b32 s28, s28, s46")
        A("    s_or_b32 s29, s28, 0x1000")
        A("    s_or_b32 s30, s28, 0x4000")
        A("    s_or_b32 s31, s28, 0x5000")
        A("L_nogl:")
    if iw:
        for n in range(6):
            A(f"    s_cmp_lg_u32 s36, {8 + n}")
            A(f"    s_cbranch_scc1 L_iw{n}")
            A(f"    s_call_b64 s[50:51], L_stub{n}")
            A(f"L_iw{n}:")
    if tx and not txe:
        touch()
    A("L_stag:")
    A("    s_barrier")
    A("    s_sub_u32 s44, s44, 1")
    A("    s_cmp_lg_u32 s44, 0")
    A("    s_cbranch_scc1 L_stag")
    A(f"    s_cmp_ge_u32 s36, {g0}")
    A("    s_cbranch_scc1 L_role0")
    A("L_t0:")

    def poll():
        for k in range(4 if not abl & 1 else (2 if abl & 8 else 0)):
            A(f"    buffer_load_dwordx4 v[{4+4*k}:{7+4*k}], v{VL}, s[24:27], s35 offen offset:{1024*k} sc1")

    def norm_valu(lo, hi):
        for i in range(lo, hi):
            for j in range(4):
                r = D + 4 * i + j
                A(f"    v_lshlrev_b32 v{8+2*j}, 16, v{r}")
                A(f"    v_and_b32 v{9+2*j}, s38, v{r}")
            for j in range(4):
                A(f"    v_pk_fma_f32 v[{8+2*j}:{9+2*j}], v[{8+2*j}:{9+2*j}], v[4:5], v[6:7]")
            for j in range(4):
                A(f"    v_cvt_pk_bf16_f32 v{D+4*i+j}, v{8+2*j}, v{9+2*j}")

    def norm_mfma(lo, hi):
        assert lo % 2 == 0 and hi % 2 == 0
        prev = None
        for b in range(lo // 2, hi // 2 + 1):
            ms, cs = [], []
            if b < hi // 2:
                tt = T + 16 * (b & 1)
                for p in range(4):
                    x = D + 8 * b + 2 * p
                    ms.append(f"    v_mfma_f32_4x4x4_16b_bf16 v[{tt+4*p}:{tt+4*p+3}], v[4:5], v[{x}:{x+1}], v[8:11]")
                for p in range(4):
                    x = D + 8 * b + 2 * p
                    ms.append(f"    v_mfma_f32_4x4x4_16b_bf16 v[{tt+4*p}:{tt+4*p+3}], v[6:7], v[{x}:{x+1}], v[{tt+4*p}:{tt+4*p+3}]")
            if prev is not None:
                tt = T + 16 * (prev & 1)
                for k in range(8):
                    cs.append(f"    v_cvt_pk_bf16_f32 v{D+8*prev+k}, v{tt+2*k}, v{tt+2*k+1}")
            if prev == lo // 2:
                A("    s_nop 1")
            for k in range(8):
                if ms: A(ms[k])
                if cs: A(cs[k])
                if mg and cs and k % 4 == 3:
                    i = 2 * prev + k // 4
                    v = D + 4 * i
                    A(f"    buffer_store_dwordx4 v[{v}:{v+3}], v{VL}, s[20:23], s{28 + i // 4} offen offset:{(i % 4) * 1024} {stf}".rstrip())
            prev = b if b < hi // 2 else None

    what = {0: "load the slice", wt: "slice mean and variance, publish", wt + 1: "gamma, beta", pl: "read the group's entries",
            ck: "group statistics, normalise", st: "store the slice"}
    for t in range(st + 1):
        A(f"    ; ---- tick {t}" + (f": {what[t]}" if t in what else ""))
        if t == 0:
            stamp(0)
            for i in range(16):
                v = D + 4 * i
                A(f"    buffer_load_dwordx4 v[{v}:{v+3}], v{VL}, s[16:19], s{28 + i // 4} offen offset:{(i % 4) * 1024} {ldf}".rstrip())
            stamp(1)
            if tprio != lprio:
                A(f"    s_setprio {tprio}")
        if t == wt - 1 and hw >= 0:
            if hwg:
                A(f"    s_sub_u32 s44, s33, {hwl}")
                A(f"    s_cmp_ge_u32 s44, {hwg - hwl}")
                A("    s_cbranch_scc1 L_nohw")
            A(f"    s_waitcnt vmcnt({hw})")
            A("L_nohw:")
        if t == wt:
            for r in range(4, 12):
                A(f"    v_mov_b32 v{r}, 0")
            if mfs:
                for r in range(12, 16):
                    A(f"    v_mov_b32 v{r}, s37")
                A("    s_nop 0")
            for i in range(16):
                A(f"    s_waitcnt vmcnt({15 - i})")
                if i == 15:
                    stamp(2)
                if mfs:
                    A(f"    v_mfma_f32_16x16x32_bf16 v[4:7], v[{D+4*i}:{D+4*i+3}], v[12:15], v[4:7]")
                else:
                    for j in range(4):
                        A(f"    v_dot2c_f32_bf16 v{4+j}, s37, v{D+4*i+j}")
                for j in range(4):
                    A(f"    v_dot2c_f32_bf16 v{8+j}, v{D+4*i+j}, v{D+4*i+j}")
            A("    s_lshl_b32 s35, s33, 12")
            A("    s_lshl_b32 s44, s34, 4")
            A("    s_waitcnt lgkmcnt(0)")
            A(f"    s_add_u32 s58, s41, 0x{TAGK:x}          ; tag")
            A("    v_add_f32 v4, v4, v5")
            A("    v_add_f32 v6, v6, v7")
            A("    v_cvt_f64_f32 v[12:13], v8")
            A("    v_add_f32 v4, v4, v6")
            A("    v_cvt_f64_f32 v[6:7], v9")
            A("    v_cvt_f64_f32 v[8:9], v10")
            A("    v_cvt_f64_f32 v[10:11], v11")
            A("    v_add_f64 v[6:7], v[6:7], v[12:13]")
            A("    v_add_f64 v[8:9], v[8:9], v[10:11]")
            A("    v_add_f64 v[6:7], v[6:7], v[8:9]")
            for n, ctl in enumerate(DPP):
                A("    s_nop 1")
                A(f"    v_mov_b32_dpp v8, v6 {ctl}")
                A(f"    v_mov_b32_dpp v9, v7 {ctl}")
                if not mfs or n >= 4:
                    A(f"    v_add_f32_dpp v4, v4, v4 {ctl}")
                A("    v_add_f64 v[6:7], v[6:7], v[8:9]")
            A(f"    v_mul_f32 v4, 0x{f32(1.0/NE):08x}, v4")
            A("    v_cvt_f64_f32 v[10:11], v4")
            A("    v_ldexp_f64 v[6:7], v[6:7], -13")
            A("    v_fma_f64 v[6:7], -v[10:11], v[10:11], v[6:7]")
            A("    v_cvt_f32_f64 v6, v[6:7]")
            if g8:
                A("    s_cmp_eq_u32 s43, 0")
                A("    v_readlane_b32 s60, v4, 63")
                A("    v_readlane_b32 s61, v6, 63")
                A("    s_cbranch_scc1 L_pub16")
                A("    s_lshr_b32 s35, s35, 1")
                A(f"    s_add_u32 s35, s35, {DYN}")
                A("    s_lshr_b32 s44, s44, 1")
                A("    s_add_u32 s44, s44, s35")
                A("    s_bitset0_b32 s61, 31")
                A("    s_atomic_swap_x2 s[60:61], s[14:15], s44")
                A("L_pub1:")
            elif spub:
                A("    s_add_u32 s44, s44, s35")
                A("    v_readlane_b32 s60, v4, 63")
                A("    v_readlane_b32 s62, v6, 63")
                A("    s_mov_b32 s61, s58")
                A("    s_mov_b32 s63, s58")
                A("    s_add_u32 s45, s44, 8")
                A("    s_nop 1")
                if abl & 8:
                    A("    s_lshl_b32 s44, s34, 3")
                    A("    s_add_u32 s44, s44, s35")
                if not abl & 2:
                    A("    s_atomic_swap_x2 s[60:61], s[14:15], s44")
                if not abl & 6:
                    A("    s_atomic_swap_x2 s[62:63], s[14:15], s45")
            else:
                A("    v_mov_b32 v5, s58")
                A("    v_mov_b32 v7, s58")
                A("    v_mov_b32 v8, s44")
                A("    s_mov_b32 exec_lo, 0")
                A("    s_mov_b32 exec_hi, 0x80000000")
                A("    buffer_store_dwordx4 v[4:7], v8, s[24:27], s35 offen sc1")
                A("    s_mov_b64 exec, -1")
            stamp(3)
        if t == wt + 1:
            A("    s_and_b32 s44, s33, 31")
            A("    s_lshl_b32 s44, s44, 5")
            A("    s_add_u32 s44, s44, s42                 ; channel")
            A("    s_lshl_b32 s44, s44, 1")
            A("    s_and_b32 s44, s44, 0x7fc")
            A("    s_load_dword s52, s[6:7], s44")
            A("    s_load_dword s53, s[8:9], s44")
            if tp:
                if tpm:
                    A(f"    s_and_b32 s44, s34, {tpm}")
                    A("    s_cbranch_scc1 L_notp")
                A("    s_and_b32 s44, s28, 0xffe00000")
                if tpo:
                    A("    s_add_u32 s48, s10, s44")
                    A("    s_addc_u32 s49, s11, 0")
                    A("    s_load_dword s59, s[48:49], 0x2000")
                A(f"    s_add_u32 s44, s44, {(tp + wt + 1) << 22}")
                A("    s_min_u32 s44, s44, 0xfe00000")
                A("    s_add_u32 s50, s4, s44")
                A("    s_addc_u32 s51, s5, 0")
                if tpx:
                    A("    s_load_dword s55, s[50:51], 0x2000")
                A("L_notp:")
            A(f"    s_mov_b32 s57, {spare}")
            if early:
                A("    ; once the draws have levelled out the entries are there one tick earlier")
                A(f"    s_and_b32 s44, s56, {mem - 1}")
                if ge:
                    A("    s_add_u32 s44, s44, 1")
                    A(f"    s_cmp_{'lt' if gelt else 'ge'}_u32 s33, {ge}")
                    A("    s_cselect_b32 s44, s44, 0")
                A(f"    s_cmp_ge_u32 s44, {eth}")
                A("    s_addc_u32 s57, s57, 0")
                A(f"    s_cmp_ge_u32 s44, {eth}")
                A("    s_cbranch_scc1 L_early")
        if t == wt + 2 and early:
            A("L_early:")
            if early2:
                if ge2:
                    A(f"    s_cmp_{'lt' if gelt else 'ge'}_u32 s33, {ge2}")
                    A("    s_cselect_b32 s44, s44, 0")
                A(f"    s_cmp_ge_u32 s44, {eth2}")
                A("    s_addc_u32 s57, s57, 0")
                A(f"    s_cmp_ge_u32 s44, {eth2}")
                A("    s_cbranch_scc1 L_early2")
        if t == wt + 3 and early2:
            A("L_early2:")
        if t == pl - 1 and prio:
            A(f"    s_setprio {prio}")
        if t == pl - 1 and sp2 >= 0:
            A(f"    s_sub_u32 s44, s33, {sp2}")
            A(f"    s_cmp_ge_u32 s44, {g0 - sp2}")
            A("    s_cbranch_scc1 L_p0")
            poll()
            A("    s_barrier")
            A("    s_branch L_p2")
            A("L_p0:")
        if t == pl and g8:
            for k in range(2):
                A(f"    buffer_load_dwordx4 v[{4+4*k}:{7+4*k}], v{VL}, s[24:27], s35 offen offset:{1024*k} sc1")
            A("    s_cmp_lg_u32 s43, 0")
            A("    s_cbranch_scc1 L_p2")
            for k in range(2, 4):
                A(f"    buffer_load_dwordx4 v[{4+4*k}:{7+4*k}], v{VL}, s[24:27], s35 offen offset:{1024*k} sc1")
            A("L_p2:")
            if nprio >= 0:
                A(f"    s_setprio {nprio}")
            A(f"    s_mov_b32 s46, {SPIN}")
        elif t == pl:
            poll()
            A(f"    s_mov_b32 s46, {SPIN}")
        if t == st and prio:
            A(f"    s_setprio {sprio}")
        if t == ck:
            A("L_poll:")
            A("    s_waitcnt vmcnt(0) lgkmcnt(0)")
            def check16():
                for k in range(4):
                    A(f"    v_xor_b32 v21, s58, v{5+4*k}")
                    A(f"    v_xor_b32 v2, s58, v{7+4*k}")
                    A("    v_or_b32 v21, v21, v2")
                    A(f"    v_cmp_ne_u32 s[{PM+2*k}:{PM+1+2*k}], 0, v21")
                A(f"    s_or_b64 s[44:45], s[{PM}:{PM+1}], s[{PM+2}:{PM+3}]")
                A(f"    s_or_b64 vcc, s[{PM+4}:{PM+5}], s[{PM+6}:{PM+7}]")
                A("    s_or_b64 vcc, vcc, s[44:45]")
                if not abl & 1:
                    A("    s_cbranch_scc1 L_again")
            if g8:
                A("    s_cmp_eq_u32 s43, 0")
                A("    s_cbranch_scc1 L_chk16")
                A("    v_or_b32 v21, v5, v7")
                A("    v_or_b32 v2, v9, v11")
                A(f"    v_cmp_gt_i32 s[{PM}:{PM+1}], 0, v21")
                A(f"    v_cmp_gt_i32 s[{PM+2}:{PM+3}], 0, v2")
                A(f"    s_or_b64 vcc, s[{PM}:{PM+1}], s[{PM+2}:{PM+3}]")
                A("    s_cbranch_scc1 L_again")
                A("L_chk1:")
            else:
                check16()
            stamp(4)
            if stamps:
                A(f"    s_mov_b32 s{SB+14}, s46")
            A("    v_readfirstlane_b32 s44, v4")
            A("    s_bitcmp1_b32 s42, 0")
            A("    s_cselect_b32 s45, 0, 16")
            if g8:
                for r in (4, 6, 8, 10):
                    A(f"    v_subrev_f32 v{r}, s44, v{r}")
                for r in (4, 6, 8, 10):
                    A(f"    v_fmac_f32 v{r+1}, v{r}, v{r}")
                A("    v_add_f32 v4, v4, v6")
                A("    v_add_f32 v8, v8, v10")
                A("    v_add_f32 v5, v5, v7")
                A("    v_add_f32 v9, v9, v11")
                A("    v_add_f32 v4, v4, v8")
                A("    v_add_f32 v5, v5, v9")
            else:
                for r in (4, 8, 12, 16):
                    A(f"    v_subrev_f32 v{r}, s44, v{r}")
                for r in (4, 8, 12, 16):
                    A(f"    v_fmac_f32 v{r+2}, v{r}, v{r}")
                A("    v_add_f32 v4, v4, v8")
                A("    v_add_f32 v12, v12, v16")
                A("    v_add_f32 v5, v6, v10")
                A("    v_add_f32 v14, v14, v18")
                A("    v_add_f32 v4, v4, v12")
                A("    v_add_f32 v5, v5, v14")
            for ctl in DPP:
                A("    s_nop 0")
                A(f"    v_add_f32_dpp v4, v4, v4 {ctl}")
                A(f"    v_add_f32_dpp v5, v5, v5 {ctl}")
            A("    s_lshl_b32 s52, s52, s45")
            A("    s_lshl_b32 s53, s53, s45")
            A("    v_readlane_b32 s46, v4, 63")
            A("    v_readlane_b32 s47, v5, 63")
            A("    s_and_b32 s52, s52, s38")
            A("    s_and_b32 s53, s53, s38")
            A(f"    v_mov_b32 v6, 0x{f32(1.0/256):08x}")
            A("    v_mul_f32 v4, s46, v6")
            A("    v_mul_f32 v5, s47, v6")
            A("    v_fma_f32 v5, -v4, v4, v5")
            A("    v_add_f32 v6, s44, v4                   ; mean")
            A("    v_cvt_pk_bf16_f32 v12, v6, v6")
            A("    v_lshlrev_b32 v12, 16, v12")
            A("    v_sub_f32 v6, s44, v12")
            A("    v_add_f32 v6, v6, v4")
            A("    v_fmac_f32 v5, v6, v6")
            A("    v_cvt_pk_bf16_f32 v5, v5, v5")
            A("    v_lshlrev_b32 v5, 16, v5")
            A(f"    v_add_f32 v5, 0x{f32(1e-5):08x}, v5")
            A("    v_cvt_pk_bf16_f32 v5, v5, v5")
            A("    v_lshlrev_b32 v5, 16, v5")
            A("    v_sqrt_f32 v5, v5")
            A("    s_nop 0")
            A("    v_cvt_pk_bf16_f32 v5, v5, v5")
            A("    v_lshlrev_b32 v5, 16, v5")
            A("    v_rcp_f32 v5, v5")
            A("    s_nop 0")
            A("    v_mul_f32 v4, s52, v5                   ; A = g / std")
            if mf:
                A("    v_cvt_pk_bf16_f32 v5, v4, v4")
                A("    v_and_b32 v13, s38, v5")
                A("    v_sub_f32 v4, v4, v13")
                A("    v_cvt_pk_bf16_f32 v7, v4, v4")
                A("    v_and_b32 v14, s38, v7")
                A("    v_add_f32 v13, v13, v14")
                A("    v_fma_f32 v8, -v12, v13, s53            ; B = b - mean*A")
                A(f"    v_and_b32 v4, v5, v{M0}")
                A(f"    v_and_b32 v5, v5, v{M1}")
                A(f"    v_and_b32 v6, v7, v{M0}")
                A(f"    v_and_b32 v7, v7, v{M1}")
                A("    v_mov_b32 v9, v8")
                A("    v_mov_b32 v10, v8")
                A("    v_mov_b32 v11, v8")
                A("    s_nop 1")
            else:
                A("    v_fma_f32 v6, -v12, v4, s53             ; B = b - mean*A")
                A("    v_mov_b32 v5, v4")
                A("    v_mov_b32 v7, v6")
        if ck <= t < ck + nn:
            cuts = [0, 16] if nn == 1 else [0, n1, 16]
            if mf:
                A("    ; out = high*x + low*x + B, four elements per lane and instruction (diagonal 4x4 matrices)")
            (norm_mfma if mf else norm_valu)(cuts[t - ck], cuts[t - ck + 1])
        if t == st:
            stamp(5)
            if gp < gp2:
                A(f"    s_sub_u32 s44, s33, {gp}")
                A(f"    s_cmp_ge_u32 s44, {gp2 - gp}")
                A("    s_cbranch_scc1 L_st1")
                for i in range(16):
                    v = D + 4 * i
                    A(f"    buffer_store_dwordx4 v[{v}:{v+3}], v{VL}, s[20:23], s{28 + i // 4} offen offset:{(i % 4) * 1024} {stf2}".rstrip())
                A("    s_branch L_st2")
                A("L_st1:")
            for i in range(0 if mg else 16):
                v = D + 4 * i
                A(f"    buffer_store_dwordx4 v[{v}:{v+3}], v{VL}, s[20:23], s{28 + i // 4} offen offset:{(i % 4) * 1024} {stf}".rstrip())
            if gp < gp2:
                A("L_st2:")
            A("    s_lshl_b32 s44, s33, 8")
            A("    s_or_b32 s44, s44, s34")
            if bump == 0:
                A(f"    s_cmp_eq_u32 s44, {(pt + 1) << 8}")
                A("    s_cbranch_scc1 L_epo")
            A("L_epo1:")
            if stamps:
                stamp(6)
                A("    s_waitcnt lgkmcnt(0)")
                for k in range(7):
                    A(f"    v_mov_b32 v{4+k}, s{SB+2*k}")
                A(f"    s_sub_u32 s46, {SPIN}, s{SB+14}")
                A("    s_lshl_b32 s45, s2, 8")
                A("    s_or_b32 s46, s46, s45")
                A("    s_lshl_b32 s45, s39, 16")
                A("    s_or_b32 s46, s46, s45")
                A("    v_mov_b32 v11, s46")
                A("    s_lshl_b32 s44, s44, 5")
                A("    s_add_u32 s44, s44, 0x20020000")
                A("    v_mov_b32 v12, s44")
                A("    s_mov_b64 exec, 1")
                A("    buffer_store_dwordx4 v[4:7], v12, s[24:27], 0 offen")
                A("    buffer_store_dwordx4 v[8:11], v12, s[24:27], 0 offen offset:16")
                A("    s_mov_b64 exec, -1")
        if t < nb0:
            A(f"    s_cmp_lt_u32 s33, {nb0 - t}")
            A(f"    s_cbranch_scc1 L_nb{t}")
        A("    s_barrier")
        if t < nb0:
            A(f"L_nb{t}:")
    if qx >= 0:
        assert gq and gd >= gq and qx <= xb
        A(f"    s_cmp_ge_u32 s33, {gd}")
        A("    s_cbranch_scc1 L_fin3")
    A("L_idle:")
    if sprio != lprio:
        A(f"    s_setprio {lprio}")
    A("    s_min_u32 s45, s57, s39")
    A("    s_sub_u32 s39, s39, s45")
    A("    s_sub_u32 s57, s57, s45")
    A("L_idle1:")
    A("    s_cmp_eq_u32 s57, 0")
    A("    s_cbranch_scc1 L_next")
    A("    s_barrier")
    A("    s_sub_u32 s57, s57, 1")
    A("    s_branch L_idle1")
    if iw:
        A("L_stub0:")
        A("    s_setpc_b64 s[50:51]")
    A("L_next:")
    A("    s_cmp_eq_u32 s43, 0")
    A("    s_cbranch_scc1 L_role0")
    if gq:
        assert route and 2048 // nk - nk >= (64 - gq) * mem
        A("    s_mov_b32 s56, -1")
        A(f"    s_cmp_ge_u32 s33, {gq}")
        A("    s_cbranch_scc1 L_drawn")
    A("L_draw:")
    A("    s_mov_b32 s56, 1")
    A("    s_atomic_add s56, s[14:15], s54 glc")
    A("L_drawn:")
    for k in range(td):
        A("    s_barrier")
    A("    s_waitcnt lgkmcnt(0)")
    A(f"    s_cmp_ge_u32 s56, {(64 - g0) * mem}")
    A("    s_cbranch_scc1 L_fin")
    A(f"    s_lshr_b32 s33, s56, {lm}")
    A(f"    s_add_u32 s33, s33, {g0}")
    A(f"    s_and_b32 s44, s56, {mem - 1}")
    A(f"    s_lshl_b32 s44, s44, {7 - lm}")
    A("    s_or_b32 s44, s44, s3")
    if route:
        A("    ; the ticket picks the counter of this wave's next draw: that keeps the counters level")
        A("    s_mul_i32 s45, s3, 4352")
        A("    s_sub_u32 s54, s54, s45")
        A("    s_add_u32 s3, s3, s56")
        A(f"    s_and_b32 s3, s3, {nk - 1}")
        A("    s_mul_i32 s45, s3, 4352")
        A("    s_add_u32 s54, s54, s45")
    A("    s_lshr_b32 s42, s44, 2")
    A("    s_lshl_b32 s34, s44, 1")
    A("    s_and_b32 s45, s43, 1")
    A("    s_or_b32 s34, s34, s45")
    A("    s_lshl_b32 s44, s44, 15")
    A("    s_lshl_b32 s45, s33, 22")
    A("    s_or_b32 s28, s44, s45")
    A("    s_or_b32 s29, s28, 0x1000")
    A("    s_lshl_b32 s46, s43, 13")
    for b in range(2):
        A(f"    s_add_u32 s44, s{28+b}, s4")
        A("    s_lshr_b32 s45, s44, 8")
        A("    s_xor_b32 s44, s44, s45")
        A("    s_xor_b32 s44, s44, s46")
        A("    s_and_b32 s44, s44, 0x2000")
        A(f"    s_or_b32 s{28+b}, s{28+b}, s44")
        A(f"    s_or_b32 s{30+b}, s{28+b}, 0x4000")
    A("L_prebar:")
    if not fuse:
        A("    s_barrier")
    for k in range(ldn):
        A("    s_nop 15")
    A("    s_branch L_t0")

    A("L_again:                                    ; read the slots still missing once more, one tick later")
    for k in range(4):
        A(f"    s_mov_b64 exec, s[{PM+2*k}:{PM+1+2*k}]")
        A(f"    s_cbranch_execz L_skip{k}")
        A(f"    buffer_load_dwordx4 v[{4+4*k}:{7+4*k}], v{VL}, s[24:27], s35 offen offset:{1024*k} sc1")
        A(f"L_skip{k}:")
    A("    s_mov_b64 exec, -1")
    A("    s_barrier")
    A("    s_add_u32 s39, s39, 1")
    A("    s_sub_u32 s46, s46, 1")
    A("    s_cmp_lg_u32 s46, 0")
    A("    s_cbranch_scc1 L_poll")
    A("    s_branch L_end")

    if g8:
        if iw:
            A("L_stub3:")
            A("    s_setpc_b64 s[50:51]")
        A("L_pub16:                                    ; first round: nothing is cleared yet, both halves carry the tag")
        A("    s_add_u32 s44, s44, s35")
        A("    s_mov_b32 s62, s61")
        A("    s_mov_b32 s61, s58")
        A("    s_mov_b32 s63, s58")
        A("    s_add_u32 s45, s44, 8")
        A("    s_atomic_swap_x2 s[60:61], s[14:15], s44")
        A("    s_atomic_swap_x2 s[62:63], s[14:15], s45")
        A("    s_branch L_pub1")
        if iw:
            A("L_stub4:")
            A("    s_setpc_b64 s[50:51]")
        A("L_chk16:")
        check16()
        for dst, src in ((5, 6), (6, 8), (7, 10), (8, 12), (9, 14), (10, 16), (11, 18)):
            A(f"    v_mov_b32 v{dst}, v{src}")
        A("    s_branch L_chk1")
    A("L_epo:                                      ; this row complete: every wave of every workgroup has read the epoch")
    A("    v_mov_b32 v4, s58")
    A(f"    v_mov_b32 v5, {EPO}")
    A("    s_mov_b64 exec, 1")
    A("    buffer_store_dword v4, v5, s[24:27], 0 offen sc1")
    A("    s_mov_b64 exec, -1")
    A("    s_branch L_epo1")

    if iw:
        A("L_stub1:")
        A("    s_setpc_b64 s[50:51]")
    A("L_role0:                                    ; first draw: wait for wave 15's result")
    A(f"    s_mov_b32 s46, {SPIN}")
    A("L_role:")
    A("    v_mov_b32 v4, 0")
    A("    ds_read_b32 v4, v4")
    A("    s_waitcnt lgkmcnt(0)")
    A("    v_readfirstlane_b32 s43, v4")
    A("    s_cmp_lg_u32 s43, 0")
    A("    s_cbranch_scc1 L_role1")
    A("    s_barrier")
    A("    s_add_u32 s39, s39, 1")
    A("    s_sub_u32 s46, s46, 1")
    A("    s_cmp_lg_u32 s46, 0")
    A("    s_cbranch_scc1 L_role")
    A("    s_branch L_end")
    if iw:
        A("L_stub2:")
        A("    s_setpc_b64 s[50:51]")
    A("L_role1:")
    if g8:
        A(f"    s_mov_b64 s[{PM+4}:{PM+5}], 0")
        A(f"    s_mov_b64 s[{PM+6}:{PM+7}], 0")
    A("    s_lshr_b32 s3, s2, 3")
    A("    s_add_u32 s3, s3, s36")
    A(f"    s_and_b32 s3, s3, {nk - 1}")
    A("    s_and_b32 s44, s43, 1")
    A(f"    s_mul_i32 s44, s44, {nk}")
    A("    s_add_u32 s44, s44, s3")
    A("    s_mul_i32 s44, s44, 4352")
    A(f"    s_add_u32 s54, s44, {CTR}")
    A("    s_branch L_draw")

    A("L_fin:")
    if not fuse:
        A("    s_barrier")
    if gd:
        A("    ; The die link carries reads and writes in turns.  Once nearly only stores are left, a lone read waits about")
        A(f"    s_cmp_ge_u32 s33, {gd}")
        A("    s_cbranch_scc1 L_fin2")
        if gdl:
            A(f"    s_cmp_lt_u32 s33, {gdl}")
            A("    s_cbranch_scc1 L_fin2")
        if sd:
            A("    s_add_u32 s12, s4, s28")
            A("    s_addc_u32 s13, s5, 0")
            for k in range(sd):
                if sdw == 1:
                    A(f"    s_load_dword s47, s[12:13], {k * 4096 // sd // 64 * 64} glc")
                else:
                    A(f"    s_load_dwordx16 s[48:63], s[12:13], {k * 4096 // sd // 64 * 64} glc")
        else:
            A(f"    v_lshlrev_b32 v4, 3, v{VL}")
            A("    s_mov_b32 exec_hi, 0")
            if dm != 0xffffffff:
                A(f"    s_mov_b32 exec_lo, 0x{dm:x}")
            if gd1:
                A(f"    s_cmp_ge_u32 s33, {gd1}")
                A(f"    s_cselect_b32 exec_lo, 0x{dm1:x}, exec_lo")
            A(f"    buffer_load_dword v{D}, v4, s[16:19], s28 offen {dlf}".rstrip())
        A("L_fin2:")
    for k in range(xb + 1):
        if qx >= 0 and k == xb - qx:
            A("L_fin3:")
        if k < xb:
            A("    s_barrier")
    if stamps == 3:
        A("    s_memrealtime s[48:49]")
        A("    s_waitcnt vmcnt(0) lgkmcnt(0)")
        A("    s_memrealtime s[50:51]")
        A("    s_waitcnt lgkmcnt(0)")
        A("    s_mov_b64 exec, 1")
        A("    v_mov_b32 v4, s48")
        A("    v_mov_b32 v5, s50")
        A("    v_mov_b32 v6, s33")
        A("    v_mov_b32 v7, s36")
        A("    s_lshl_b32 s44, s2, 4")
        A("    s_or_b32 s44, s44, s36")
        A("    s_lshl_b32 s44, s44, 4")
        A("    s_add_u32 s44, s44, 0x20000000")
        A("    v_mov_b32 v8, s44")
        A("    buffer_store_dwordx4 v[4:7], v8, s[24:27], 0 offen")
    if bump > 0:
        assert pt + 1 <= bump < g0
        A("    s_lshl_b32 s44, s2, 4")
        A("    s_or_b32 s44, s44, s36")
        A(f"    s_cmp_lg_u32 s44, {bump}")
        A("    s_cbranch_scc1 L_end")
        A("    s_mov_b64 exec, 1")
        A("    v_mov_b32 v4, s58")
        A(f"    v_mov_b32 v5, {EPO}")
        A("    buffer_store_dword v4, v5, s[24:27], 0 offen sc1")
    A("L_end:")
    A("    s_endpgm")

    A(".p2align 6")
    A("L_w15:                                      ; wave 15 before its first slice: time, announce, collect")
    A("    s_waitcnt lgkmcnt(0)")
    A("    s_memtime s[48:49]")
    A("    s_waitcnt lgkmcnt(0)")
    A(f"    s_load_dword s47, s[12:13], {0x10000 if pglc == 2 else 0} glc")
    A("    s_waitcnt lgkmcnt(0)")
    if shots == 2:
        A("    s_memtime s[52:53]")
        A("    s_waitcnt lgkmcnt(0)")
        A(f"    s_load_dword s47, s[12:13], {0x20000 if pglc == 2 else 0} glc")
        A("    s_waitcnt lgkmcnt(0)")
    A("    s_memtime s[50:51]")
    if p1:
        A("    s_barrier")
    A("    s_getreg_b32 s40, hwreg(HW_REG_XCC_ID)")
    A("    s_bfe_u32 s40, s40, 0x10002")
    A("    v_mov_b32 v4, 0")
    A("    ds_write_b32 v4, v4")
    A("    s_waitcnt lgkmcnt(0)")
    if shots == 2:
        A("    s_sub_u32 s46, s52, s48")
        A("    s_sub_u32 s45, s50, s52")
    else:
        A("    s_sub_u32 s46, s50, s48")
    if dbg == 2:
        A("    s_sub_u32 s45, s48, s70")
    if dbg in (1, 2):
        A("    v_mov_b32 v5, s46")
        A("    s_getreg_b32 s47, hwreg(HW_REG_XCC_ID)")
        A("    v_mov_b32 v7, s47")
        A("    v_mov_b32 v4, s4")
        A("    v_mov_b32 v6, s45")
        A("    s_lshl_b32 s47, s2, 4")
        A("    v_mov_b32 v8, s47")
        A("    s_mov_b32 s26, 0x40000000")
        A("    s_mov_b32 s47, 0x20000000")
        A("    s_mov_b64 exec, 1")
        A("    buffer_store_dwordx4 v[4:7], v8, s[24:27], s47 offen")
        A("    s_mov_b64 exec, -1")
    if shots == 2:
        A("    s_min_u32 s46, s46, s45")
    A(f"    s_sub_i32 s46, s46, {t0}")
    A(f"    s_ashr_i32 s46, s46, {sh}")
    A("    s_min_i32 s46, s46, 63")
    A("    s_max_i32 s46, s46, 0")
    A("    s_bfe_u32 s47, s2, 0x10003")
    A("    s_cmp_eq_u32 s47, s40")
    A("    s_cselect_b32 s47, 0, 63")
    A("    s_xor_b32 s46, s46, s47")
    A("    s_lshl_b32 s47, s40, 6")
    A("    s_or_b32 s46, s46, s47")
    A(f"    s_add_u32 s58, s41, 0x{TAGK:x}          ; tag")
    A("    s_and_b32 s47, s58, 0xffffff00")
    A("    s_or_b32 s59, s46, s47")
    A("    s_lshl_b32 s46, s2, 3")
    A(f"    s_add_u32 s46, s46, {ANN}")
    A("    s_waitcnt vmcnt(0)")
    if spub:
        A("    s_mov_b64 s[62:63], s[58:59]")
        A("    s_atomic_swap_x2 s[62:63], s[14:15], s46")
    else:
        A("    v_mov_b32 v4, s58")
        A("    v_mov_b32 v5, s59")
        A("    v_mov_b32 v6, s46")
        A("    s_mov_b64 exec, 1")
        A("    buffer_store_dwordx2 v[4:5], v6, s[24:27], 0 offen sc1")
        A("    s_mov_b64 exec, -1")
    A(f"    s_mov_b32 s45, {ANN}")
    A(f"    s_mov_b32 s46, {SPIN}")
    if aprio:
        A(f"    s_setprio {aprio}")
    for t in range(pt, fl - fd):
        A("    s_barrier")
    A("L_ann:")
    A(f"    buffer_load_dwordx4 v[4:7], v{VL}, s[24:27], s45 offen sc1")
    A(f"    buffer_load_dwordx4 v[8:11], v{VL}, s[24:27], s45 offen offset:1024 sc1")
    for t in range(fd):
        A("    s_barrier")
    A("    s_waitcnt vmcnt(0)")
    for r in (4, 6, 8, 10):
        A(f"    v_xor_b32 v{r}, s58, v{r}")
    for k, r in enumerate((5, 7, 9, 11)):
        A(f"    v_xor_b32 v{12+k}, s58, v{r}")
    A("    v_or3_b32 v12, v12, v13, v14")
    A("    v_or_b32 v12, v12, v15")
    A("    v_and_b32 v12, 0xffffff00, v12")
    A("    v_or3_b32 v12, v12, v4, v6")
    A("    v_or3_b32 v12, v12, v8, v10")
    A("    v_cmp_ne_u32 vcc, 0, v12")
    A("    s_cbranch_vccz L_annok")
    A(f"    s_add_u32 s39, s39, {fd}")
    A("    s_sub_u32 s46, s46, 1")
    A("    s_cmp_lg_u32 s46, 0")
    A("    s_cbranch_scc1 L_ann")
    A("    s_branch L_end")
    if iw:
        A("L_stub5:")
        A("    s_setpc_b64 s[50:51]")
    A("L_annok:                                    ; everybody has cleared its share and announced")
    for r in (5, 7, 9, 11):
        A(f"    v_and_b32 v{r-1}, 64, v{r}")
        A(f"    v_and_b32 v{r}, 63, v{r}")
    A("    v_add3_u32 v4, v4, v6, v8")
    A("    v_add3_u32 v5, v5, v7, v9")
    A("    v_add_u32 v4, v4, v10")
    A("    v_add_u32 v5, v5, v11")
    A("    v_lshl_add_u32 v5, v4, 10, v5")
    for ctl in DPP:
        A("    s_nop 1")
        A(f"    v_add_u32_dpp v5, v5, v5 {ctl}")
    A("    s_bfe_u32 s46, s2, 0x10002")
    A("    v_readlane_b32 s44, v5, 63")
    A("    s_lshr_b32 s45, s44, 16")
    A("    s_and_b32 s44, s44, 0xffff")
    A("    s_cmp_eq_u32 s45, 128")
    A("    s_cselect_b32 s46, s40, s46")
    if dbg == 3:
        A("    v_mov_b32 v6, s44")
        A("    v_mov_b32 v7, 0x6fff0")
        A("    buffer_store_dword v6, v7, s[24:27], 0 offen")
    A("    s_cmp_gt_u32 s44, 8064")
    A("    s_cselect_b32 s44, 1, 0")
    if force >= 0:
        A("    s_bfe_u32 s44, s4, 0x10015")
        A(f"    s_xor_b32 s44, s44, {force}")
    A("    s_xor_b32 s44, s44, s46")
    A("    s_or_b32 s44, s44, 2")
    A("    v_mov_b32 v4, 0")
    A("    v_mov_b32 v5, s44")
    A("    ds_write_b32 v4, v5")
    A("    s_waitcnt lgkmcnt(0)")
    if aprio:
        A("    s_setprio 0")
    A(f"    s_mov_b32 s57, {14 - td - fl + fuse - (xs > 0)}")
    A("    s_branch L_idle")
    A("L_last:")
    A("    s_endpgm")
    return finish(o, vgpr, 88 if stamps else 72)


if __name__ == "__main__":
    import inspect
    p = argparse.ArgumentParser()
    for k, v in inspect.signature(gen).parameters.items():
        p.add_argument("--" + k, type=(lambda z: int(z, 0)) if isinstance(v.default, int) else str, default=v.default)
    p.add_argument("-o", default="-")
    a = vars(p.parse_args())
    out = a.pop("o")
    open(out, "w").write(gen(**a))
```
